```python
import torch

def _softmax(x, axis=-1):
    return torch.softmax(x, dim=axis)

def _gelu(x):
    return torch.nn.functional.gelu(x, approximate='tanh')

def _silu(x):
    return torch.nn.functional.silu(x)

def _sigmoid(x):
    return torch.sigmoid(x)

def _layernorm(x, axis=-1, eps=1e-05):
    m = x.mean(dim=axis, keepdim=True)
    v = x.var(dim=axis, keepdim=True, unbiased=False)
    return (x - m) / torch.sqrt(v + eps)

def _scatter_add(tgt, idx, src, axis=0):
    return tgt.clone().index_add_(axis, idx, src)

def _segment_sum(src, seg, n):
    out = torch.zeros((n,) + src.shape[1:], dtype=src.dtype)
    return out.index_add_(0, seg, src)

def _pad(x, pw):
    flat = tuple((v for pair in reversed(pw) for v in pair))
    return torch.nn.functional.pad(x, flat)
kernel_name = 'concat_heads__memory_aug_recurrent_mem_tr__linear_attn_block__prompt'

def setup_inputs():

    _w = lambda a: (lambda t: t.to(torch.bfloat16) if t.is_floating_point() else t)(torch.as_tensor(a))

    def _A_setup():
        B, S, Dm = (1, 2048, 448)
        H, Dh = (16, 256)
        M, seg = (8, 32)
        seg = min(seg, S)
        S = S // seg * seg
        return {'x': _w((lambda *s: torch.randn(*s, dtype=torch.bfloat16) * 0.05)(B, S, Dm)), 'mem0': _w((lambda *s: torch.randn(*s, dtype=torch.bfloat16) * 0.8)(B, M, Dm)), 'Wq': _w((lambda *s: torch.randn(*s, dtype=torch.bfloat16) * 1.6)(Dm, H, Dh) * Dm ** (-0.5)), 'Wk': _w((lambda *s: torch.randn(*s, dtype=torch.bfloat16) * 1.6)(Dm, H, Dh) * Dm ** (-0.5)), 'Wv': _w((lambda *s: torch.randn(*s, dtype=torch.bfloat16) * 0.8)(Dm, H, Dh) * Dm ** (-0.5)), 'Wo': _w((lambda *s: torch.randn(*s, dtype=torch.bfloat16) * 0.8)(H, Dh, Dm) * (H * Dh) ** (-0.5)), 'seg_len': seg}
    _A_in = _A_setup()

    def _B_setup():
        B, S, D = (1, 2048, 448)
        return {'x': _w((lambda *s: torch.randn(*s, dtype=torch.bfloat16) * 0.05)(B, S, D)), 'wqkv': _w((lambda *s: torch.randn(*s, dtype=torch.bfloat16) * 1.6)(D, 3 * D)), 'wo': _w((lambda *s: torch.randn(*s, dtype=torch.bfloat16) * 0.1)(D, D))}
    _B_in = _B_setup()
    return {'A_x': _A_in['x'], 'A_mem0': _A_in['mem0'], 'A_Wq': _A_in['Wq'], 'A_Wk': _A_in['Wk'], 'A_Wv': _A_in['Wv'], 'A_Wo': _A_in['Wo'], 'A_seg_len': _A_in['seg_len'], 'B_x': _B_in['x'], 'B_wqkv': _B_in['wqkv'], 'B_wo': _B_in['wo']}

def reference(A_x, A_mem0, A_Wq, A_Wk, A_Wv, A_Wo, A_seg_len, B_x, B_wqkv, B_wo):

    def _A_ref(x, mem0, Wq, Wk, Wv, Wo, seg_len):
        B, S, Dm = x.shape
        H, Dh = (Wq.shape[1], Wq.shape[2])
        M = mem0.shape[1]
        scale = Dh ** (-0.5)
        n_seg = S // seg_len
        L = M + seg_len
        idx = torch.arange(L)
        mask = (idx[:, None] < M) | (idx[:, None] >= idx[None, :])
        mem = mem0
        outs = []
        for s in range(n_seg):
            xs = x[:, s * seg_len:(s + 1) * seg_len, :].clone()
            h = torch.concatenate([mem, xs], axis=1)
            q = torch.einsum('btd,dhe->bhte', h, Wq)
            k = torch.einsum('btd,dhe->bhte', h, Wk)
            v = torch.einsum('btd,dhe->bhte', h, Wv)
            scores = torch.einsum('bhqe,bhke->bhqk', q, k) * scale
            scores = torch.where(mask[None, None], scores, -1000000000.0)
            p = _softmax(scores, axis=-1)
            o = torch.einsum('bhqk,bhke->bhqe', p, v)
            o = torch.einsum('bhte,hed->btd', o, Wo)
            mem = o[:, :M, :].clone()
            outs.append(o[:, M:, :])
        return torch.concatenate(outs, axis=1)

    def _B_ref(x, wqkv, wo):
        B, S, D = x.shape
        H = 16
        Dh = D // H
        qkv = (lambda x, *d: x.permute(*d))((x @ wqkv).reshape(B, S, 3, H, Dh), 2, 0, 3, 1, 4)
        q, k, v = (qkv[0], qkv[1], qkv[2])
        phi = lambda t: torch.where(t > 0, t + 1, torch.exp(t)) + 1e-06
        pq, pk = (phi(q), phi(k))
        kv = torch.einsum('bhsd,bhse->bhde', pk, v)
        z = torch.einsum('bhsd->bhd', pk)
        num = torch.einsum('bhqd,bhde->bhqe', pq, kv)
        den = torch.einsum('bhqd,bhd->bhq', pq, z)[..., None] + 1e-06
        o = num / den
        return (lambda x, *d: x.permute(*d))(o, 0, 2, 1, 3).reshape(B, S, D) @ wo
    a = _A_ref(A_x, A_mem0, A_Wq, A_Wk, A_Wv, A_Wo, A_seg_len)
    b = _B_ref(B_x, B_wqkv, B_wo)
    return torch.concatenate([a, b], axis=-1)
```

```python
import sys
from layout import *

NAME = 'concat_heads__memory_aug_recurrent_mem_tr__linear_attn_block__prompt'

class G:
    def __init__(self, opt):
        self.L = []; self.n = 0; self.opt = opt
    def __call__(self, s):
        for x in s.strip().split('\n'):
            self.L.append('    ' + x.strip())
    def lab(self, l): self.L.append(l + ':')
    def uniq(self, p):
        self.n += 1; return f'{p}_{self.n}'

def v(a, n=1): return f'v{a}' if n == 1 else f'v[{a}:{a+n-1}]'
def a_(a, n=1): return f'a{a}' if n == 1 else f'a[{a}:{a+n-1}]'
def s(a, n=1): return f's{a}' if n == 1 else f's[{a}:{a+n-1}]'

S_X, S_MEM0, S_WQ, S_WK, S_WV, S_WO, S_BX = 4, 6, 8, 10, 12, 14, 18
S_WQKV, S_BWO, S_OUT, S_DBG, S_WS = 20, 22, 24, 26, 28
S_XCC, S_W, S_ROLE, S_MODE, S_STEP, S_SPIN = 30, 31, 32, 33, 34, 35
DBG_CH = 4
DBG_ERR = 8
SPIN = 1 << 20

def blk(b, lo=0, n=8):
    if b < 32: return a_(8*b + lo, n)
    return v(120 + 8*(b-32) + lo, n)

def lanemap(g, dst, terms, const=0, sconst=None, lane=0, tmp=None):
    first = True
    if sconst is not None:
        g(f'v_mov_b32 {v(dst)}, {s(sconst)}')
        if const: g(f'v_add_u32 {v(dst)}, {const}, {v(dst)}')
    else:
        g(f'v_mov_b32 {v(dst)}, {const}')
    for sh, bits, mul in terms:
        g(f'v_bfe_u32 {v(tmp)}, {v(lane)}, {sh}, {bits}')
        if mul & (mul-1) == 0:
            g(f'v_lshl_add_u32 {v(dst)}, {v(tmp)}, {mul.bit_length()-1}, {v(dst)}')
        else:
            g(f'v_mul_u32_u24 {v(tmp)}, {mul}, {v(tmp)}')
            g(f'v_add_u32 {v(dst)}, {v(tmp)}, {v(dst)}')

def sbase(g, dst, src, off, sreg=None, mul=0, tmp=None):
    if sreg is not None:
        g(f's_mul_i32 {s(tmp)}, {s(sreg)}, {mul}')
        g(f's_add_u32 {s(tmp)}, {s(tmp)}, {off}')
        g(f's_add_u32 {s(dst)}, {s(src)}, {s(tmp)}')
    else:
        g(f's_add_u32 {s(dst)}, {s(src)}, {off}')
    g(f's_addc_u32 {s(dst+1)}, {s(src+1)}, 0')

def sadv(g, r, inc):
    g(f's_add_u32 {s(r)}, {s(r)}, {inc}')
    g(f's_addc_u32 {s(r+1)}, {s(r+1)}, 0')

def spin_guard(g):
    g(f's_sub_u32 {s(S_SPIN)}, {s(S_SPIN)}, 1')
    g(f's_cbranch_scc1 L_bail')

def stamp(g, idx):
    if g.opt.get('stamp', 0) >> idx & 1:
        g(f's_memtime {s(80+2*idx,2)}')
def stampi(g, idx):
    return [f's_memtime {s(80+2*idx,2)}'] if g.opt.get('stamp', 0) >> idx & 1 else []

def interleave(g, mf, fill):
    for i, m in enumerate(mf):
        if m is None: continue
        g(m)
        for f in fill.get(i, []):
            if f.endswith(':'): g.lab(f[:-1])
            else: g(f)

def prologue(g):
    g(f'''
    s_load_dwordx16 s[4:19], s[0:1], 0
    s_load_dwordx8 s[20:27], s[0:1], 64
    s_load_dwordx2 s[28:29], s[0:1], 96
    s_getreg_b32 {s(S_XCC)}, hwreg(HW_REG_XCC_ID)
    v_lshrrev_b32 v1, 6, v0
    v_and_b32 v0, 63, v0
    v_readfirstlane_b32 {s(S_W)}, v1
    s_and_b32 {s(S_XCC)}, {s(S_XCC)}, 7
    s_mov_b32 {s(S_SPIN)}, {SPIN}
    s_waitcnt lgkmcnt(0)
    s_cmp_lg_u32 {s(S_W)}, 0
    s_cbranch_scc1 L_role_wait
    s_mov_b64 exec, 1
    s_mov_b32 s36, 0
    v_mov_b32 v2, 1
    ''')
    g.lab('L_tick')
    g(f'''
    s_add_u32 s37, {s(S_XCC)}, s36
    s_and_b32 s37, s37, 7
    s_lshl_b32 s38, s37, 5
    v_mov_b32 v1, s38
    global_atomic_add v3, v1, v2, {s(S_DBG,2)} sc0
    s_waitcnt vmcnt(0)
    v_readfirstlane_b32 s39, v3
    s_cmp_lt_u32 s39, 32
    s_cbranch_scc1 L_tick_got
    s_add_u32 s36, s36, 1
    s_cmp_lt_u32 s36, 8
    s_cbranch_scc1 L_tick
    s_mov_b32 s38, 0xffff
    s_branch L_tick_pub
    ''')
    g.lab('L_tick_got')
    g(f'''
    s_add_u32 s38, s38, s39
    s_cmp_lg_u32 s36, 0
    s_cselect_b32 s36, 0x100, 0
    s_or_b32 s38, s38, s36
    ''')
    g.lab('L_tick_pub')
    g(f'''
    v_mov_b32 v1, 0
    v_mov_b32 v2, s38
    ds_write_b32 v1, v2
    s_waitcnt lgkmcnt(0)
    s_mov_b64 exec, -1
    ''')
    g.lab('L_role_wait')
    g(f'''
    s_barrier
    v_mov_b32 v1, 0
    ds_read_b32 v2, v1
    s_waitcnt lgkmcnt(0)
    v_readfirstlane_b32 {s(S_ROLE)}, v2
    s_barrier
    s_cmp_eq_u32 {s(S_ROLE)}, 0xffff
    s_cbranch_scc1 L_end
    s_lshr_b32 {s(S_MODE)}, {s(S_ROLE)}, 8
    s_and_b32 {s(S_ROLE)}, {s(S_ROLE)}, 0xff
    s_cmp_ge_u32 {s(S_ROLE)}, 32
    s_cbranch_scc1 L_worker
    ''')

def chain_init(g):
    g(f'''
    s_cmp_lg_u32 {s(S_W)}, 0
    s_cbranch_scc1 L_pre_sig
    s_mov_b64 exec, 1
    s_lshl_b32 s36, {s(S_MODE)}, 16
    s_add_u32 s36, s36, 1
    v_mov_b32 v1, {DBG_CH}
    v_mov_b32 v2, s36
    global_atomic_add v1, v2, {s(S_DBG,2)}
    s_mov_b64 exec, -1
    ''')
    g.lab('L_pre_sig')
    g(f'''
    s_cmp_ge_u32 {s(S_ROLE)}, 30
    s_cbranch_scc1 L_helper
    s_cmp_ge_u32 {s(S_ROLE)}, 16
    s_cbranch_scc1 L_vcu
    ''')

def wait_chain_ready(g, tv):
    l = g.uniq('L_cw')
    g(f'v_mov_b32 {v(tv)}, {DBG_CH}')
    g.lab(l)
    spin_guard(g)
    g(f'''
    global_load_dword {v(tv+1)}, {v(tv)}, {s(S_DBG,2)} sc1
    s_waitcnt vmcnt(0)
    v_readfirstlane_b32 s36, {v(tv+1)}
    s_and_b32 s37, s36, 0xffff
    s_cmp_lg_u32 s37, 32
    s_cbranch_scc1 {l}
    s_lshr_b32 {s(S_MODE)}, s36, 16
    ''')

def load_blocks(g, base, voff, nblk, lds=None):
    out = 0
    for b in range(nblk):
        for h in range(2):
            g(f'global_load_dwordx4 {blk(b, 4*h, 4)}, {v(voff)}, {s(base,2)} offset:{(b&1)*2048 + h*1024} sc1')
        if b & 1: sadv(g, base, 4096)
        if b >= 24: g('s_waitcnt vmcnt(48)')

S_ROT = 56
def rot_table(g):
    if g.opt.get('rot', 1):
        g(f's_lshl_b32 s36, {s(S_W)}, 1')
        g(f's_add_u32 s36, s36, {s(S_ROLE)}')
        g(f's_mul_i32 s37, s36, 37')
        g(f's_lshr_b32 s37, s37, 8')
        g(f's_mul_i32 s37, s37, 7')
        g(f's_sub_u32 s36, s36, s37')
    else:
        g('s_mov_b32 s36, 0')
    g(f's_lshl_b32 {s(S_ROT)}, s36, 10')
    for t in range(1, 7):
        g(f's_add_u32 {s(S_ROT+t)}, {s(S_ROT+t-1)}, 1024')
        g(f's_cmp_eq_u32 {s(S_ROT+t)}, 7168')
        g(f's_cselect_b32 {s(S_ROT+t)}, 0, {s(S_ROT+t)}')

def srd(g, r):
    g(f's_mov_b32 {s(r+2)}, -1')
    g(f's_mov_b32 {s(r+3)}, 0x00020000')

def load_blocks_rot(g, base, voff, ntile, dst):
    n = 0
    for tau in range(ntile):
        for t in range(7):
            g(f's_lshl_b32 s36, {s(S_ROT+t)}, 1')
            for h in range(2):
                g(f'buffer_load_dwordx4 {dst(tau,t,h)}, {v(voff)}, {s(base,4)}, s36 offen offset:{1024*h} sc1')
            n += 2
            if n > 48: g('s_waitcnt vmcnt(48)')
        sadv(g, base, 14336)

def chk(g, regs, tmp, lab):
    L = []
    regs = list(regs)
    cur = regs.pop(0)
    while regs:
        if len(regs) >= 2:
            L.append(f'v_max3_u32 {v(tmp)}, {v(cur)}, {v(regs[0])}, {v(regs[1])}'); regs = regs[2:]
        else:
            L.append(f'v_max_u32 {v(tmp)}, {v(cur)}, {v(regs[0])}'); regs = []
        cur = tmp
    L.append(f'v_cmp_eq_u32 vcc, -1, {v(cur)}')
    L.append(f's_cbranch_vccnz {lab}')
    return L

def store2(g, instr):
    l1 = g.uniq('L_st'); l2 = g.uniq('L_st')
    g(f's_cbranch_scc1 {l1}')
    g(instr)
    g.lab(l2)
    g.tail.append((l1, [instr + ' sc1', f's_branch {l2}']))

def SM(d, a, b, idx): return f'v_smfmac_f32_16x16x64_bf16 {v(d,4)}, {v(a,4)}, {b}, {v(idx)}'

def okchk(g, regs, tmp, lab):
    L = chk(g, regs, tmp, lab)
    L[-1] = f's_cbranch_vccz {lab}'
    return L

def poll2(g, n, SI, VL, R0, R1, T0, head, sleep, sets):
    def ld(R):
        for t in range(2): g(f'buffer_load_dwordx4 {v(R+4*t,4)}, {v(VL)}, {s(SI,4)}, {s(S_ROT+t)} offen sc1')
    if sleep: g(f's_sleep {sleep}')
    if sets == 1:
        g.lab(f'L_{n}_poll')
        ld(R0)
        spin_guard(g)
        g('s_waitcnt vmcnt(0)')
        for x in chk(g, [R0, R0+2, R0+4, R0+6], T0, f'L_{n}_poll'): g(x)
        head(R0)
        return
    ld(R0)
    g(f's_sleep {g.opt.get("stag", 2)}')
    g.lab(f'L_{n}_poll')
    ld(R1)
    spin_guard(g)
    g('s_waitcnt vmcnt(2)')
    for x in okchk(g, [R0, R0+2, R0+4, R0+6], T0, f'L_{n}_go0'): g(x)
    ld(R0)
    g('s_waitcnt vmcnt(2)')
    for x in chk(g, [R1, R1+2, R1+4, R1+6], T0, f'L_{n}_poll'): g(x)
    head(R1)
    g(f's_branch L_{n}_go')
    g.lab(f'L_{n}_go0')
    head(R0)
    g.lab(f'L_{n}_go')

def tcu(g):
    if g.opt.get('pplain'): g.L = [x.replace('v[4:7], s[36:37] sc1','v[4:7], s[36:37]') for x in g.L]
    ACC, IMG, XK, MK = 0, 28, 56, 88
    VL, VIDX, VMK0, VMK1, VX0, VX1, VTA, VTB, VTC, VTR, VSW, VSR, T0, T1, VPS, T2 = range(104, 120)
    SI, SP, SXA, SXB, SPF, SPI, SPL = 40, 52, 44, 46, 54, 64, 65
    TB, SB, IB, XB, XP = 256, 256 + 8192, 16384, 24576, 1040
    SXM, SEX, JUNK = 66, 68, 23552
    g.lab('L_tcu')
    LN = T2
    g(f'v_mov_b32 {v(LN)}, v0')
    g(f'v_lshlrev_b32 {v(VL)}, 4, {v(LN)}')
    g(f's_lshl_b32 s36, {s(S_ROLE)}, 2')
    g(f's_add_u32 s36, s36, {s(S_W)}')
    sbase(g, 48, S_WS, WS_A, 36, 49*2048, 37)
    NPF = g.opt.get('npf', 0)
    sbase(g, SPF, S_WS, WS_VX, 36, 128*NPF, 37)
    g(f's_mov_b32 {s(SPI)}, {VX_STEP}')
    g(f's_mov_b32 {s(SPL)}, {128*max(NPF-1,0)}')
    g(f's_mov_b32 {s(SEX)}, 0x03ff03ff')
    g(f's_mov_b32 {s(SEX+1)}, 0x03ff03ff')
    srd(g, 48)
    rot_table(g)
    load_blocks_rot(g, 48, VL, 7, lambda tau, t, h: blk(tau*7+t, 4*h, 4))
    g(f'''
    v_and_b32 {v(T0)}, 1, {v(LN)}
    v_cmp_eq_u32 vcc, 1, {v(T0)}
    v_mov_b32 {v(VIDX)}, 0x44444444
    v_mov_b32 {v(T0)}, 0xeeeeeeee
    v_cndmask_b32 {v(VIDX)}, {v(VIDX)}, {v(T0)}, vcc
    s_mul_i32 s36, {s(S_W)}, {7*256}
    s_mul_i32 s37, {s(S_W)}, {7*32}
    v_lshrrev_b32 {v(T1)}, 4, {v(LN)}
    v_min_u32 {v(T1)}, 2, {v(T1)}
    ''')
    lanemap(g, VMK0, [(4, 2, 256), (0, 3, 32)], sconst=36, lane=LN, tmp=T0)
    lanemap(g, VMK1, [(0, 3, 32)], const=1024, sconst=36, lane=LN, tmp=T0)
    g(f'v_lshl_add_u32 {v(VMK1)}, {v(T1)}, 8, {v(VMK1)}')
    key = [(3, 1, 8*XP), (2, 1, 2*XP), (0, 1, XP), (1, 1, 4*XP)]
    lanemap(g, VX0, key + [(4, 2, 32)], const=XB, sconst=37, lane=LN, tmp=T0)
    lanemap(g, VX1, key, const=XB+128, sconst=37, lane=LN, tmp=T0)
    g(f'v_lshl_add_u32 {v(VX1)}, {v(T1)}, 5, {v(VX1)}')
    g(f's_lshl_b32 s36, {s(S_W)}, 11')
    lanemap(g, VTA, [(1, 1, 512), (3, 1, 256), (4, 2, 64), (0, 1, 16), (2, 1, 8)], const=TB, sconst=36, lane=LN, tmp=T0)
    lanemap(g, VTB, [(2, 1, 512), (4, 2, 64), (0, 1, 16), (3, 1, 8), (1, 1, 4)], const=TB+1024, sconst=36, lane=LN, tmp=T0)
    lanemap(g, VTC, [(3, 1, 512), (4, 2, 64), (1, 1, 16), (2, 1, 4), (0, 1, 2)], const=TB+1024+256, sconst=36, lane=LN, tmp=T0)
    lanemap(g, VTR, [(0, 6, 16)], const=TB, sconst=36, lane=LN, tmp=T0)
    g(f's_mul_i32 s36, {s(S_W)}, 1792')
    lanemap(g, VSW, [(4, 2, 448), (0, 4, 4)], const=SB, sconst=36, lane=LN, tmp=T0)
    g(f'''
    v_mov_b32 v0, 0
    v_mov_b32 v1, 0
    v_mov_b32 v2, 0
    v_mov_b32 v3, 0
    ds_write_b128 {v(VTR)}, v[0:3] offset:1024
    v_mov_b32 v0, 0xf149f2ca
    ''')
    lanemap(g, T1, [(3, 3, 224), (0, 3, 4)], const=SB+192, sconst=36, lane=LN, tmp=T0)
    g(f'ds_write_b32 {v(T1)}, v0')
    g(f's_mul_i32 s36, {s(S_W)}, 448')
    lanemap(g, VSR, [(4, 1, 224)], const=SB, sconst=36, lane=LN, tmp=T0)
    lanemap(g, 0, [(5, 1, 10), (0, 4, 1)], lane=LN, tmp=T0)
    g(f"""
    v_and_b32 {v(T0)}, 15, {v(LN)}
    v_cmp_gt_u32 vcc, 10, {v(T0)}
    v_lshlrev_b32 {v(T0)}, 3, v0
    v_mov_b32 {v(T1)}, 192
    v_cndmask_b32 {v(T0)}, {v(T1)}, {v(T0)}, vcc
    v_add_u32 {v(VSR)}, {v(VSR)}, {v(T0)}
    s_and_b32 s37, {s(S_ROLE)}, 3
    s_lshl_b32 s36, {s(S_W)}, 6
    s_lshl_b32 s38, s37, 9
    s_add_u32 s36, s36, s38
    """)
    lanemap(g, VPS, [(3, 1, 256), (1, 1, 16), (2, 1, 8), (0, 1, 4)], sconst=36, lane=0, tmp=T0)
    g(f'v_bfe_u32 v1, {v(LN)}, 4, 1')
    g(f'v_lshl_add_u32 {v(VPS)}, v1, 5, {v(VPS)}')
    g(f"""
    s_lshl_b32 s36, {s(S_W)}, 5
    s_and_b32 s38, s37, 1
    s_lshl_b32 s38, s38, 3
    s_add_u32 s36, s36, s38
    s_lshr_b32 s38, s37, 1
    s_lshl_b32 s38, s38, 2
    s_add_u32 s36, s36, s38
    """)
    lanemap(g, T1, [(0, 2, 128)], const=2048, sconst=36, lane=0, tmp=T0)
    g(f'v_lshl_add_u32 {v(T1)}, v1, 4, {v(T1)}')
    g(f"""
    v_cmp_lt_u32 vcc, 15, v0
    s_nop 1
    v_cndmask_b32 {v(VPS)}, {v(VPS)}, {v(T1)}, vcc
    s_lshr_b32 s37, {s(S_ROLE)}, 2
    """)
    sbase(g, SI, S_WS, WS_MEM)
    srd(g, SI)
    sbase(g, SP, S_WS, WS_P, 37, 2560, 36)
    sbase(g, SXA, S_X, 0, S_W, 8*896, 36)
    sbase(g, SXB, SXA, 4*896)
    g(f's_mul_i32 {s(SXM)}, {s(S_W)}, {8*XP}')
    g(f's_add_u32 {s(SXM)}, {s(SXM)}, {XB}')
    g(f'v_min_u32 {v(T2)}, 880, {v(VL)}')
    def xm0(r): return f's_add_u32 m0, {s(SXM)}, {r*XP - 896*(r&3)}'
    def xld(r): return f'global_load_lds_dwordx4 {v(T2)}, {s(SXA+2*(r>>2),2)} offset:{896*(r&3)}'
    def xadv():
        adv = 0 if g.opt.get('fix') else 32*896
        sadv(g, SXA, adv); sadv(g, SXB, adv)
    g(f's_mov_b32 {s(S_STEP)}, 0')
    wait_chain_ready(g, T0)
    PFD = g.opt.get('pfd', 3); NPF = g.opt.get('npf', 0)
    WA, WB, TA = MK+8, MK+9, MK+10
    def taddr():
        g(f'v_lshlrev_b32 {v(TA)}, 3, {v(VL)}')
        g(f'v_min_u32 {v(TA)}, {s(SPL)}, {v(TA)}')
    touch = [f's_mov_b32 m0, {JUNK}', f'global_load_lds_dword {v(TA)}, {s(SPF,2)} sc1']
    if NPF:
        taddr()
        for i in range(PFD):
            g(touch[0]); g('s_nop 0'); g(touch[1])
            sadv(g, SPF, s(SPI))
    for r in range(8):
        g(xm0(r)); g('s_nop 0'); g(xld(r))
    xadv()
    g('s_waitcnt vmcnt(0)')
    dump_stamps(g, T0, calib=True)
    g.lab('L_t_loop')
    g(f's_waitcnt vmcnt({2 if g.opt.get("stamp") else 1})')
    g('s_barrier')
    for ks in range(2):
        for kt in range(2):
            for h in range(2):
                g(f'ds_read_b128 {v(XK+16*kt+8*ks+4*h,4)}, {v(VX0+ks)} offset:{16*XP*kt+16*h}')
    for i in range(28): g(f'v_mov_b32 {v(ACC+i)}, 0')
    for t in range(7):
        g(f'v_add_u32 {v((WA, WB)[t] if t < 2 else IMG+4*t)}, {s(S_ROT+t)}, {v(VL)}')
    if NPF: taddr()
    def T(tau, t, R=None): return SM(ACC+4*tau, (IMG if R is None else R)+4*t, blk(tau*7+t), VIDX)
    XS = g.opt.get('xs', 4); X0 = g.opt.get('x0', 13)
    xpos = [X0 + XS*r for r in range(8)]
    def head(R):
        stamp(g, 0)
        g(f'ds_write_b128 {v(WA)}, {v(R,4)} offset:{IB}')
        g(f'ds_write_b128 {v(WB)}, {v(R+4,4)} offset:{IB}')
        mf = [T(tau, t, R) for t in range(2) for tau in range(7)]
        rd = [f'ds_read_b128 {v(IMG+4*t,4)}, {v(IMG+4*t)} offset:{IB}' for t in range(2, 7)]
        bp = g.opt.get('bp', 6)
        fill = {bp: ['s_waitcnt lgkmcnt(0)', 's_barrier'] + rd[:1], bp+1: rd[1:3], bp+2: rd[3:5]}
        if NPF: fill[2] = touch[:1]; fill[3] = touch[1:]
        fill[13] = ['s_waitcnt lgkmcnt(4)']
        interleave(g, mf, fill)
    poll2(g, 't', SI, VL, IMG, MK, T0, head, g.opt.get('tsleep', 0), g.opt.get('tsets', 2))
    mf = [None]*14; fill = {}
    def put(i, L): fill.setdefault(i, []).extend(L)
    for tau in range(7): mf.append(T(tau, 2))
    nyoung = (1 if NPF else 0) + sum(1 for p in xpos if p < 20)
    put(20, [f's_waitcnt vmcnt({nyoung}) lgkmcnt(0)'])
    mkl = [f'ds_read_b128 {v(MK+8*ks+4*h,4)}, {v(VMK0+ks)} offset:{IB+16*h}' for ks in range(2) for h in range(2)]
    X0 = max(X0, 15)
    xpos = [X0 + XS*r for r in range(8)]
    for r in range(8):
        put(xpos[r]-1, [xm0(r)]); put(xpos[r], [xld(r)])
    fill[20] = [f's_waitcnt vmcnt({(1 if NPF else 0) + sum(1 for p in xpos if p < 20)}) lgkmcnt(0)'] + fill[20][1:]
    for t in range(3, 7):
        for tau in range(4): mf.append(T(tau, t))
    SACC = IMG
    for t in range(3, 7):
        for tau in (4, 5): mf.append(T(tau, t))
    for t in range(3, 7): mf.append(T(6, t))
    def add(tau): return [f'v_add_f32 {v(ACC+4*tau)}, {v(ACC+4*tau)}, {v(ACC+4*tau+1)}',
                          f'v_add_f32 {v(ACC+4*tau+2)}, {v(ACC+4*tau+2)}, {v(ACC+4*tau+3)}']
    def cvt(d, x, y): return f'v_cvt_pk_bf16_f32 {v(d)}, {v(x)}, {v(y)}'
    loose = mkl + [f'v_mov_b32 {v(SACC+i)}, 0' for i in range(12)]
    for i in range(21, 36):
        while loose and len(fill.get(i, [])) < 2: put(i, [loose.pop(0)])
    assert not loose
    pa = g.opt.get('pa', 36)
    put(pa, add(0)); put(pa+1, add(1)); put(pa+2, add(2)); put(pa+3, add(3))
    put(pa+4, [cvt(T0, ACC+0, ACC+4), cvt(T1, ACC+8, ACC+12)])
    put(pa+5, [cvt(ACC+0, ACC+2, ACC+6), cvt(ACC+1, ACC+10, ACC+14)])
    put(pa+6, [f'ds_write_b64 {v(VTA)}, {v(T0,2)}', f'ds_write_b64 {v(VTA)}, {v(ACC,2)} offset:32'])
    put(pa+7, [f'ds_read_b128 {v(ACC+4,4)}, {v(VTR)}'])
    put(46, add(4)); put(47, add(5))
    put(48, [cvt(ACC+16, ACC+16, ACC+20), cvt(ACC+17, ACC+18, ACC+22),
             f'ds_write2_b32 {v(VTB)}, {v(ACC+16)}, {v(ACC+17)} offset1:8', 's_waitcnt lgkmcnt(1)'])
    def Sm(kt, ks, a):
        b = v(XK+16*kt+8*ks, 8) if kt < 2 else v(MK+8*ks, 8)
        return SM(SACC+4*kt, a, b, VIDX)
    for kt in range(3): mf.append(Sm(kt, 0, ACC+4))
    put(49, ['s_nop 1'] + add(6) + [cvt(ACC+24, ACC+24, ACC+26),
                f'ds_write_b16 {v(VTC)}, {v(ACC+24)}',
                f'ds_write_b16_d16_hi {v(VTC)}, {v(ACC+24)} offset:32',
                f'ds_read_b128 {v(ACC+8,4)}, {v(VTR)} offset:1024'])
    put(51, ['s_waitcnt lgkmcnt(0)'])
    for kt in range(3): mf.append(Sm(kt, 1, ACC+8))
    for k, i in enumerate(g.opt.get('sp', [])): put(i, stampi(g, 5+k))
    interleave(g, mf, fill)
    stamp(g, 1)
    g('s_nop 3')
    for kt in range(3):
        g(f'v_add_f32 {v(SACC+4*kt)}, {v(SACC+4*kt)}, {v(SACC+4*kt+1)}')
        g(f'v_add_f32 {v(SACC+4*kt+2)}, {v(SACC+4*kt+2)}, {v(SACC+4*kt+3)}')
        g(f'ds_write2_b32 {v(VSW)}, {v(SACC+4*kt)}, {v(SACC+4*kt+2)} offset0:{16*kt} offset1:{16*kt+56}')
    g('s_waitcnt lgkmcnt(0)')
    g('s_barrier')
    R = ACC
    for k in range(4): g(f'ds_read_b64 {v(R+2*k,2)}, {v(VSR)} offset:{1792*k}')
    stamp(g, 4)
    g(f's_cmp_lg_u32 {s(S_MODE)}, 0')
    g('s_waitcnt lgkmcnt(2)')
    for i in range(2): g(f'v_add_f32 {v(R+i)}, {v(R+i)}, {v(R+2+i)}')
    g('s_waitcnt lgkmcnt(0)')
    for i in range(2): g(f'v_add_f32 {v(R+4+i)}, {v(R+4+i)}, {v(R+6+i)}')
    for i in range(2): g(f'v_add_f32 {v(R+i)}, {v(R+i)}, {v(R+4+i)}')
    M, A, B = R+4, R+5, R+6
    def allred(op):
        d = lambda dst, src, r, o: f'v_{op}_f32_dpp {v(dst)}, {v(src)}, {v(o)} row_ror:{r} row_mask:0xf bank_mask:0xf'
        g('s_nop 1')
        g(d(A, M, 1, M)); g(d(A, M, 2, A)); g(d(A, M, 3, A))
        g('s_nop 1')
        g(d(M, A, 4, A)); g(d(M, A, 8, M)); g(d(B, A, 12, M)); g(d(M, A, 12, M))
        g('s_nop 1')
        g(f'v_permlane32_swap_b32 {v(M)}, {v(B)}')
        g(f'v_{op}_f32 {v(M)}, {v(M)}, {v(B)}')
    g(f'v_max_f32 {v(M)}, {v(R)}, {v(R+1)}')
    allred('max')
    for i in range(2): g(f'v_sub_f32 {v(R+i)}, {v(R+i)}, {v(M)}')
    for i in range(2): g(f'v_exp_f32 {v(R+i)}, {v(R+i)}')
    g('s_nop 0')
    g(f'v_add_f32 {v(M)}, {v(R)}, {v(R+1)}')
    allred('add')
    g(f'v_rcp_f32 {v(M)}, {v(M)}')
    g(f's_mov_b64 exec, {s(SEX,2)}')
    for i in range(2): g(f'v_mul_f32_e64 {v(R+i)}, {v(R+i)}, {v(M)} clamp')
    g(cvt(R, R, R+1))
    store2(g, f'global_store_dword {v(VPS)}, {v(R)}, {s(SP,2)}')
    g('s_mov_b64 exec, -1')
    stamp(g, 2)
    dump_stamps(g, T0)
    sadv(g, SI, 8192); sadv(g, SP, 10240)
    xadv()
    if NPF:
        g(f's_cmp_lt_u32 {s(S_STEP)}, {62-PFD}')
        g(f's_cselect_b32 s36, {s(SPI)}, 0')
        sadv(g, SPF, 's36')
    g(f"""
    s_add_u32 {s(S_STEP)}, {s(S_STEP)}, 1
    s_cmp_lt_u32 {s(S_STEP)}, 63
    s_cbranch_scc1 L_t_loop
    s_endpgm
    """)

def dump_stamps(g, tv, calib=False):
    if not g.opt.get('stamp'): return
    if calib:
        g('s_memrealtime s[80:81]'); g('s_memtime s[82:83]')
    g(f'''
    s_lshl_b32 s36, {s(S_ROLE)}, 2
    s_add_u32 s36, s36, {s(S_W)}
    s_lshl_b32 s36, s36, 6
    s_add_u32 s36, s36, {63 if calib else s(S_STEP)}
    s_lshl_b32 s36, s36, 5
    s_add_u32 s36, s36, {WS_DBG}
    v_mbcnt_lo_u32_b32 {v(tv)}, -1, 0
    s_waitcnt lgkmcnt(0)
    v_lshl_add_u32 {v(tv)}, {v(tv)}, 2, s36
    ''')
    for i in range(8):
        g(f'v_writelane_b32 {v(tv+1)}, {s(80+2*i)}, {i}')
    g('s_mov_b64 exec, 0xff')
    g(f'global_store_dword {v(tv)}, {v(tv+1)}, {s(S_WS,2)}')
    g('s_mov_b64 exec, -1')

def vcu(g):
    ACC, IMG, VX, LB, VM = 0, 32, 60, 92, 108-8
    VL, VIDX, VPX, VPM, VRW, VRR, VMS, VLB, VRDY, T0, T1, T2 = range(108, 120)
    SI, SP, SVX, SVM, SMX, SF = 40, 64, 44, 46, 66, 52
    RB, IB, BB = 256, 6144, 16384
    S_J = 54
    g.lab('L_vcu')
    LN = T2
    g(f'v_mov_b32 {v(LN)}, v0')
    g(f'v_lshlrev_b32 {v(VL)}, 4, {v(LN)}')
    g(f's_sub_u32 {s(S_J)}, {s(S_ROLE)}, 16')
    g(f's_lshl_b32 s36, {s(S_J)}, 2')
    g(f's_add_u32 s36, s36, {s(S_W)}')
    sbase(g, 48, S_WS, WS_B, 36, 56*2048, 37)
    sbase(g, SVX, S_WS, WS_VX + 4096, 36, 8192, 37)
    srd(g, 48)
    rot_table(g)
    load_blocks_rot(g, 48, VL, 8, lambda al, t, h: blk(al*7+t, 4*h, 4) if al < 7 else v(8*t+4*h, 4))
    g(f's_mul_i32 s36, {s(S_W)}, 14336')
    lanemap(g, VLB, [(0, 6, 16)], const=BB, sconst=36, lane=LN, tmp=T0)
    g('s_waitcnt vmcnt(0)')
    for b in range(7):
        for h in range(2):
            g(f'ds_write_b128 {v(VLB)}, {v(8*b+4*h,4)} offset:{2048*b+1024*h}')
    g(f'''
    v_and_b32 {v(T0)}, 1, {v(LN)}
    v_cmp_eq_u32 vcc, 1, {v(T0)}
    v_mov_b32 {v(VIDX)}, 0x44444444
    v_mov_b32 {v(T0)}, 0xeeeeeeee
    v_cndmask_b32 {v(VIDX)}, {v(VIDX)}, {v(T0)}, vcc
    ''')
    g(f'v_lshlrev_b32 {v(VPM)}, 3, {v(LN)}')
    g(f's_mul_i32 s36, {s(S_W)}, 1280')
    lanemap(g, VRW, [(4, 2, 320), (0, 4, 4)], const=RB, sconst=36, lane=LN, tmp=T0)
    lanemap(g, VRR, [(3, 3, 160), (0, 3, 16)], const=RB, lane=LN, tmp=T0)
    g(f's_lshl_b32 s36, {s(S_J)}, 9')
    lanemap(g, VMS, [(2, 1, 256), (3, 3, 32), (0, 2, 8)], const=8192, sconst=36, lane=LN, tmp=T0)
    sbase(g, SI, S_WS, WS_MEM)
    srd(g, SI)
    sbase(g, SP, S_WS, WS_P, S_W, 2560, 36)
    g(f'v_mov_b32 {v(VRDY)}, {WS_FLG + F_RDY}')
    g(f's_mov_b32 {s(S_STEP)}, 0')
    wait_chain_ready(g, T0)

    dump_stamps(g, T0, calib=True)
    g.lab('L_v_loop')
    g(f'global_load_dword {v(T1)}, {v(VRDY)}, {s(S_WS,2)} sc1')
    for i in range(32): g(f'v_mov_b32 {v(ACC+i)}, 0')
    WA, WB = VX+8, VX+9
    for t in range(7):
        g(f'v_add_u32 {v((WA, WB)[t] if t < 2 else IMG+4*t)}, {s(S_ROT+t)}, {v(VL)}')
    def lb(t): return [f'ds_read_b128 {v(LB+4*h,4)}, {v(VLB)} offset:{2048*t+1024*h}' for h in range(2)]
    for x in lb(0): g(x)
    def kstep(t, R):
        return [SM(ACC+28, R, v(LB, 8), VIDX)] + [SM(ACC+4*al, R, blk(al*7+t), VIDX) for al in range(7)]
    def slow(name, L):
        L = L + [f's_sub_u32 {s(S_SPIN)}, {s(S_SPIN)}, 1', 's_cbranch_scc1 L_bail', 's_waitcnt vmcnt(0)', f's_branch {name}_re']
        g.tail.append((name, L))
    slow('L_v_s3', [f'global_load_dword {v(T1)}, {v(VRDY)}, {s(S_WS,2)} sc1'])
    def head(R):
        stamp(g, 0)
        g(f'ds_write_b128 {v(WA)}, {v(R,4)} offset:{IB}')
        g(f'ds_write_b128 {v(WB)}, {v(R+4,4)} offset:{IB}')
        g('s_waitcnt lgkmcnt(2)')
        mf = kstep(0, R) + kstep(1, R+4)
        rd = [f'ds_read_b128 {v(IMG+4*t,4)}, {v(IMG+4*t)} offset:{IB}' for t in range(2, 7)]
        fill = {1: lb(1), 7: ['s_waitcnt lgkmcnt(0)', 's_barrier'], 9: lb(2), 10: rd[:2], 11: rd[2:4], 12: rd[4:],
                15: ['s_waitcnt lgkmcnt(0)']}
        fill[13] = ['L_v_s3_re:'] + chk(g, [T1], T0, 'L_v_s3')
        interleave(g, mf, fill)
    assert g.opt.get('vsets', 1) == 1
    poll2(g, 'v', SI, VL, IMG, VX, T0, head, g.opt.get('vsleep', 0), 1)
    mf = [None]*16; fill = {}
    for t in range(2, 7):
        mf += kstep(t, IMG+4*t)
        if t < 6:
            fill[8*t+1] = lb(t+1)
            fill[8*t+7] = ['s_waitcnt lgkmcnt(0)']
    k = 0
    for kap in range(2):
        for tile in range(2):
            for c2 in range(2):
                fill.setdefault(16+g.opt.get('vs', 4)*k, []).append(
                    f'global_load_dwordx4 {v(VX+16*kap+8*tile+4*c2,4)}, {v(VL)}, {s(SVX,2)} offset:{((2*kap+c2)*2+tile)*1024-4096} sc1')
                k += 1
    interleave(g, mf, fill)
    order = [7, 0, 1, 2, 3, 4, 5, 6]
    g('s_nop 1')
    for al in order:
        q, tile = al >> 1, al & 1
        g(f'v_add_f32 {v(ACC+4*al)}, {v(ACC+4*al)}, {v(ACC+4*al+1)}')
        g(f'v_add_f32 {v(ACC+4*al+2)}, {v(ACC+4*al+2)}, {v(ACC+4*al+3)}')
        g(f'v_cvt_pk_bf16_f32 {v(VM+4*tile+q)}, {v(ACC+4*al)}, {v(ACC+4*al+2)}')
    stamp(g, 1)
    PA, PV = IMG, IMG+12
    for i in range(8): g(f'v_mov_b32 {v(PV+i)}, 0')
    if g.opt.get('psleep'): g(f's_sleep {g.opt["psleep"]}')
    def pld(R):
        g(f'global_load_dwordx4 {v(R,4)}, {v(VL)}, {s(SP,2)} sc1')
        g(f'global_load_dwordx4 {v(R+4,4)}, {v(VL)}, {s(SP,2)} offset:1024 sc1')
        g(f'global_load_dwordx2 {v(R+8,2)}, {v(VPM)}, {s(SP,2)} offset:2048 sc1')
    def pv(R):
        stamp(g, 2)
        for kap in range(2):
            for tile in range(2):
                g(SM(PV+4*tile, R+4*kap, v(VX+16*kap+8*tile, 8), VIDX))
        for tile in range(2):
            g(f'v_smfmac_f32_16x16x32_bf16 {v(PV+4*tile,4)}, {v(R+8,2)}, {v(VM+4*tile,4)}, {v(VIDX)}')
    pr = lambda R: list(range(R, R+10))
    if g.opt.get('psets', 2) == 1:
        g.lab('L_v_ppoll')
        pld(PA)
        spin_guard(g)
        g('s_waitcnt vmcnt(0)')
        for x in chk(g, pr(PA), T0, 'L_v_ppoll'): g(x)
        pv(PA)
    else:
        PB = ACC+16
        pld(PA)
        g(f's_sleep {g.opt.get("stag", 2)}')
        g.lab('L_v_ppoll')
        pld(PB)
        spin_guard(g)
        g('s_waitcnt vmcnt(3)')
        for x in okchk(g, pr(PA), T0, 'L_v_pgo0'): g(x)
        pld(PA)
        g('s_waitcnt vmcnt(3)')
        for x in chk(g, pr(PB), T0, 'L_v_ppoll'): g(x)
        pv(PB)
        g('s_branch L_v_pgo')
        g.lab('L_v_pgo0')
        pv(PA)
        g.lab('L_v_pgo')
    g('s_nop 6')
    for tile in range(2):
        g(f'v_add_f32 {v(PV+4*tile)}, {v(PV+4*tile)}, {v(PV+4*tile+1)}')
        g(f'v_add_f32 {v(PV+4*tile+2)}, {v(PV+4*tile+2)}, {v(PV+4*tile+3)}')
        g(f'ds_write2_b32 {v(VRW)}, {v(PV+4*tile)}, {v(PV+4*tile+2)} offset0:{16*tile} offset1:{16*tile+40}')
    g(f's_cmp_lg_u32 {s(S_W)}, 0')
    g('s_waitcnt lgkmcnt(0)')
    g('s_barrier')
    g('s_cbranch_scc1 L_v_nored')
    R = ACC
    for k in range(4): g(f'ds_read_b128 {v(R+4*k,4)}, {v(VRR)} offset:{1280*k}')
    stamp(g, 4)
    g(f's_cmp_lg_u32 {s(S_MODE)}, 0')
    g('s_waitcnt lgkmcnt(2)')
    for i in range(4): g(f'v_add_f32 {v(R+i)}, {v(R+i)}, {v(R+4+i)}')
    g('s_waitcnt lgkmcnt(0)')
    for i in range(4): g(f'v_add_f32 {v(R+8+i)}, {v(R+8+i)}, {v(R+12+i)}')
    for i in range(4): g(f'v_add_f32 {v(R+i)}, {v(R+i)}, {v(R+8+i)}')
    g(f'v_cvt_pk_bf16_f32 {v(R)}, {v(R)}, {v(R+1)}')
    g(f'v_cvt_pk_bf16_f32 {v(R+1)}, {v(R+2)}, {v(R+3)}')
    g(f'v_min_u32 {v(R)}, 0xfffffffe, {v(R)}')
    store2(g, f'global_store_dwordx2 {v(VMS)}, {v(R,2)}, {s(SI,2)}')
    stamp(g, 3)
    g('s_waitcnt vmcnt(1)')
    g.lab('L_v_join')
    g.tail.append(('L_v_nored', stampi(g, 3) + ['s_waitcnt vmcnt(0)', 's_branch L_v_join']))
    dump_stamps(g, T0)
    sadv(g, SI, 8192); sadv(g, SP, 10240); sadv(g, SVX, 0 if g.opt.get('fix') else VX_STEP)
    g(f'v_add_u32 {v(VRDY)}, 4, {v(VRDY)}')
    g(f's_add_u32 {s(S_STEP)}, {s(S_STEP)}, 1')
    g(f's_cmp_lt_u32 {s(S_STEP)}, 63')
    g('s_cbranch_scc1 L_v_loop')
    g('s_endpgm')

def helper(g):
    g.lab('L_helper')
    wait_chain_ready(g, 4)
    g(f'''
    v_lshlrev_b32 v1, 4, v0
    s_cmp_lg_u32 {s(S_ROLE)}, 30
    s_cbranch_scc1 L_end
    s_cmp_eq_u32 {s(S_W)}, 1
    s_cbranch_scc1 L_h_rdy
    s_cmp_lg_u32 {s(S_W)}, 0
    s_cbranch_scc1 L_end
    ''')
    sbase(g, 40, S_WS, WS_MEM + 8192 + 4096)
    sbase(g, 42, S_WS, WS_MEM - 8192 + 4096)
    g(f's_mov_b32 {s(S_STEP)}, 1')
    g.lab('L_h_cp')
    for t in range(7): g(f'global_load_dwordx4 {v(4+4*t,4)}, v1, s[40:41] offset:{1024*t-4096} sc1')
    spin_guard(g)
    g('s_waitcnt vmcnt(0)')
    for x in chk(g, [4+2*i for i in range(14)], 2, 'L_h_cp'): g(x)
    for t in range(7): g(f'global_store_dwordx4 v1, {v(4+4*t,4)}, s[42:43] offset:{1024*t-4096} sc1')
    sadv(g, 40, 8192)
    g(f'''
    s_sub_u32 s42, s42, 8192
    s_subb_u32 s43, s43, 0
    s_add_u32 {s(S_STEP)}, {s(S_STEP)}, 1
    s_sleep {g.opt.get('hsleep', 16)}
    s_cmp_lt_u32 {s(S_STEP)}, 64
    s_cbranch_scc1 L_h_cp
    s_endpgm
    ''')
    g.lab('L_h_rdy')
    sbase(g, 40, S_WS, WS_FLG)
    g(f'''
    v_lshlrev_b32 v1, 2, v0
    v_add_u32 v2, 256, v1
    v_min_u32 v2, 444, v2
    v_mov_b32 v8, {F_RDY}
    v_mov_b32 v9, 1
    s_mov_b32 {s(S_STEP)}, 0
    ''')
    g.lab('L_h_r0')
    g(f'''
    s_and_b32 s36, {s(S_STEP)}, 3
    s_mul_i32 s36, s36, 448
    s_lshr_b32 s37, {s(S_STEP)}, 2
    v_add_u32 v3, s36, v1
    v_add_u32 v4, s36, v2
    ''')
    g.lab('L_h_r1')
    g(f'global_load_dword v5, v3, s[40:41] offset:{F_VX} sc1')
    g(f'global_load_dword v6, v4, s[40:41] offset:{F_VX} sc1')
    spin_guard(g)
    g(f'''
    s_waitcnt vmcnt(0)
    v_min_i32 v5, v5, v6
    v_cmp_ge_i32 vcc, s37, v5
    s_cbranch_vccnz L_h_r1
    s_mov_b64 exec, 1
    s_cmp_lg_u32 {s(S_MODE)}, 0
    ''')
    store2(g, 'global_store_dword v8, v9, s[40:41]')
    g(f'''
    s_mov_b64 exec, -1
    v_add_u32 v8, 4, v8
    s_add_u32 {s(S_STEP)}, {s(S_STEP)}, 1
    s_cmp_lt_u32 {s(S_STEP)}, 64
    s_cbranch_scc1 L_h_r0
    s_endpgm
    ''')

def kd(K, nv, acc):
    return f'''.amdhsa_kernel {K}
  .amdhsa_next_free_vgpr {nv}
  .amdhsa_next_free_sgpr 102
  .amdhsa_accum_offset {acc}
  .amdhsa_group_segment_fixed_size 0
  .amdhsa_kernarg_size 104
  .amdhsa_user_sgpr_count 2
  .amdhsa_user_sgpr_kernarg_segment_ptr 1
  .amdhsa_system_sgpr_workgroup_id_x 1
.end_amdhsa_kernel
'''

def build(opt):
    import gen_prep, gen_w
    g = G(opt); g.tail = []
    K = NAME + '_kernel'
    hdr = ['; @launch kernel=prep_kernel grid=(256,1,1) block=(256,1,1) lds=163840',
           f'; @launch kernel={K} grid=(256,1,1) block=(256,1,1) lds={opt.get("lds", 98304)}',
           '.amdgcn_target "amdgcn-amd-amdhsa--gfx950"', '.text',
           '.globl prep_kernel', '.p2align 8', '.type prep_kernel,@function']
    gen_prep.prep(g)
    g.L += [f'.globl {K}', '.p2align 8', f'.type {K},@function', f'{K}:']
    prologue(g)
    chain_init(g)
    tcu(g)
    vcu(g)
    helper(g)
    for l, L in g.tail:
        g.lab(l)
        for x in L: g(x)
    g.tail = []
    g.lab('L_bail')
    g(f'''
    s_mov_b64 exec, 1
    v_mov_b32 v0, {DBG_ERR}
    v_mov_b32 v1, 1
    global_atomic_add v0, v1, {s(S_DBG,2)}
    ''')
    g.lab('L_end')
    g('s_endpgm')
    gen_w.worker(g)
    assert not g.tail
    ftr = '.section .rodata,"a"\n.p2align 6\n' + kd('prep_kernel', 256, 256) + '.p2align 6\n' + kd(K, 512, 256)
    return '\n'.join(hdr + g.L) + '\n' + ftr

if __name__ == '__main__':
    opt = {}
    out = sys.argv[1]
    for a in sys.argv[2:]:
        k, x = a.split('='); opt[k] = [int(y) for y in x.split(',')] if k == 'sp' else int(x)
    open(out, 'w').write(build(opt))
```

```python
from gen import *

class Cnt:
    def __init__(self, g, name, cap):
        self.g = g; self.name = name; self.cap = cap; self.q = []; self.done = 0
    def issue(self, tag, n=1):
        for _ in range(n): self.q.append(tag)
    def need(self, tag):
        idx = max(i for i, t in enumerate(self.q) if t == tag)
        if idx < self.done: return None
        return len(self.q) - 1 - idx
    def wait(self, tag):
        n = self.need(tag)
        if n is None: return
        n = min(n, self.cap)
        self.g(f's_waitcnt {self.name}({n})')
        self.done = len(self.q) - n

def MF(d, a, b): return f'v_mfma_f32_16x16x32_bf16 {d}, {a}, {b}, {d}'
SCALE = 0x3db8aa3b

def prep(g):
    ACC, AOP, BOP, NBOP = 0, 112, 144, 6
    VA0, VA1, VB, VRA, VRB, VL, T0, LN = 168, 169, 170, 176, 177, 184, 185, 186
    IM = 192
    S_H, S_CQ, S_DH, S_ISB = 36, 37, 38, 39
    RA, RB, RO, RX = 40, 48, 56, 72
    S_LA = 70
    LA = 65536
    g.lab('prep_kernel')
    g(f'''
    s_cmp_ge_u32 s2, 256
    s_cbranch_scc1 P_end
    s_load_dwordx16 s[4:19], s[0:1], 0
    s_load_dwordx8 s[20:27], s[0:1], 64
    s_load_dwordx2 s[28:29], s[0:1], 96
    v_lshrrev_b32 v1, 6, v0
    v_and_b32 {v(LN)}, 63, v0
    v_readfirstlane_b32 {s(S_W)}, v1
    v_lshlrev_b32 {v(VL)}, 4, {v(LN)}
    s_and_b32 s80, s2, 7
    s_lshl_b32 s80, s80, 2
    s_lshr_b32 s81, s2, 6
    s_add_u32 s80, s80, s81
    s_and_b32 {s(S_H)}, s80, 15
    s_lshr_b32 {s(S_ISB)}, s80, 4
    s_bfe_u32 {s(S_CQ)}, s2, 0x20004
    s_bfe_u32 {s(S_DH)}, s2, 0x10003
    s_mul_i32 {s(S_LA)}, {s(S_W)}, 24576
    s_add_u32 {s(S_LA)}, {s(S_LA)}, {LA}
    ''')
    g(f'''
    v_lshrrev_b32 {v(T0)}, 4, {v(LN)}
    v_xor_b32 {v(T0)}, {v(T0)}, {v(LN)}
    v_and_b32 {v(T0)}, 7, {v(T0)}
    v_lshlrev_b32 v2, 4, {v(T0)}
    v_xor_b32 v3, 64, v2
    ''')
    lanemap(g, VA0, [(5, 1, 4*8192), (4, 1, 8*8192), (3, 1, 8192)], lane=LN, tmp=T0)
    g(f'v_add_u32 {v(VA1)}, {16*8192}, {v(VA0)}')
    g(f'v_add_u32 {v(VA0)}, v2, {v(VA0)}')
    g(f'v_add_u32 {v(VA1)}, v3, {v(VA1)}')
    lanemap(g, VRA, [(0, 4, 128)], lane=LN, tmp=T0)
    g(f'''
    v_bfe_u32 v4, {v(LN)}, 1, 3
    v_lshrrev_b32 v5, 4, {v(LN)}
    v_xor_b32 v4, v4, v5
    v_lshl_add_u32 {v(VRA)}, v4, 4, {v(VRA)}
    s_waitcnt lgkmcnt(0)
    s_cmp_lg_u32 {s(S_ISB)}, 0
    s_cselect_b32 s80, {s(S_WV)}, {s(S_WQ)}
    s_cselect_b32 s81, {s(S_WV+1)}, {s(S_WQ+1)}
    s_mul_i32 s82, {s(S_DH)}, {224*8192}
    s_lshl_b32 s83, {s(S_W)}, 19
    s_add_u32 s82, s82, s83
    s_lshl_b32 s83, {s(S_H)}, 9
    s_add_u32 s82, s82, s83
    s_add_u32 {s(RA)}, s80, s82
    s_addc_u32 {s(RA+1)}, s81, 0
    ''')
    for rt in range(1, 4):
        sbase(g, RA+2*rt, RA, (32*(rt >> 1) + 2*(rt & 1))*8192)
    g(f'''
    s_cmp_eq_u32 s2, 63
    s_cbranch_scc1 P_nofill
    s_cmp_ge_u32 s2, {PRE_UNITS}
    s_cbranch_scc1 P_nofill
    v_mov_b32 v4, -1
    v_mov_b32 v5, -1
    v_mov_b32 v6, -1
    v_mov_b32 v7, -1
    s_lshl_b32 s80, s2, 13
    s_lshl_b32 s81, {s(S_W)}, 11
    s_add_u32 s80, s80, s81
    s_add_u32 s80, s80, {WS_PRE}
    s_add_u32 s80, {s(S_WS)}, s80
    s_addc_u32 s81, {s(S_WS+1)}, 0
    global_store_dwordx4 {v(VL)}, v[4:7], s[80:81]
    global_store_dwordx4 {v(VL)}, v[4:7], s[80:81] offset:1024
    ''')
    g.lab('P_nofill')
    g(f'''
    s_cmp_lg_u32 {s(S_ISB)}, 0
    s_cbranch_scc1 P_B
    s_cmp_eq_u32 {s(S_W)}, 3
    s_cbranch_scc1 P_A3
    ''')
    for isB in (0, 1):
        for w3 in (0, 1):
            g.lab(f'P_{"AB"[isB]}{"3" if w3 else ""}')
            if isB and not w3:
                g(f's_cmp_eq_u32 {s(S_W)}, 3')
                g('s_cbranch_scc1 P_B3')
            variant(g, isB, w3, locals())
    g.lab('P_end')
    g('s_endpgm')

def variant(g, isB, w3, E):
    ACC, AOP, BOP, NBOP, VA0, VA1, VB, VRA, VRB, VL, T0, LN, IM = [E[k] for k in
        'ACC AOP BOP NBOP VA0 VA1 VB VRA VRB VL T0 LN IM'.split()]
    S_H, S_CQ, S_DH, RA, RB, RO, RX, S_LA = [E[k] for k in 'S_H S_CQ S_DH RA RB RO RX S_LA'.split()]
    NRT = 2 if w3 else 4
    vm = Cnt(g, 'vmcnt', 63); lg = Cnt(g, 'lgkmcnt', 15)
    def dma(m0, vaddr, sa, off, tag):
        g(m0); g('s_nop 0')
        g(f'global_load_lds_dwordx4 {v(vaddr)}, {s(sa,2)} offset:{off}')
        vm.issue(tag)
    if not isB:
        g(f'''
        s_mul_i32 s82, {s(S_CQ)}, {112*8192}
        s_lshl_b32 s83, {s(S_H)}, 9
        s_add_u32 s82, s82, s83
        ''')
        R = 8192
        pats = [([(5, 1, 16*R), (4, 1, 8*R), (3, 1, 2*R)], 32*R),
                ([(3, 3, 2*R)], 16*R), ([(3, 3, R)], 8*R)]
        for k, (terms, bo) in enumerate(pats if w3 else pats[:1]):
            lanemap(g, VB+2*k, terms, lane=LN, tmp=T0)
            g(f'v_add_u32 {v(VB+2*k+1)}, {bo}, {v(VB+2*k)}')
            g(f'v_add_u32 {v(VB+2*k)}, v2, {v(VB+2*k)}')
            g(f'v_add_u32 {v(VB+2*k+1)}, v3, {v(VB+2*k+1)}')
        if w3:
            for k, ro in enumerate((5, 64, 65, 96)):
                g(f's_add_u32 s83, s82, {ro*R}')
                g(f's_add_u32 {s(RB+2*k)}, {s(S_WK)}, s83')
                g(f's_addc_u32 {s(RB+2*k+1)}, {s(S_WK+1)}, 0')
            taus = [(3, 0, 0), (4, 1, 1), (5, 1, 2), (6, 2, 3)]
            def bpart(ec):
                for tau, pat, k in taus:
                    for be in range(2):
                        dma(f's_mov_b32 m0, {ec*14336 + tau*2048 + be*1024 - ec*128}', VB+2*pat+be, RB+2*k, ec*128, ('d', ec))
        else:
            g(f'''
            s_mul_i32 s83, {s(S_W)}, {s(S_W)}
            s_lshl_b32 s83, s83, 13
            s_add_u32 s83, s83, s82
            s_add_u32 {s(RB)}, {s(S_WK)}, s83
            s_addc_u32 {s(RB+1)}, {s(S_WK+1)}, 0
            s_lshl_b32 s84, {s(S_W)}, 11
            ''')
            def bpart(ec):
                for be in range(2):
                    dma(f's_add_u32 m0, s84, {ec*14336 + be*1024 - ec*128}', VB+be, RB, ec*128, ('d', ec))
        g(f'v_xor_b32 {v(VRB)}, 64, {v(VRA)}')
        def bread(dst, ec, ka, T):
            g(f'ds_read_b128 {v(dst,4)}, {v(VRB if ka else VRA)} offset:{ec*14336 + T*2048}')
            lg.issue(('b', ec, ka, T))
        g(f'''
        s_lshl_b32 s80, {s(S_H)}, 2
        s_add_u32 s80, s80, {s(S_CQ)}
        s_mul_i32 s80, s80, {49*2048}
        s_mul_i32 s81, {s(S_DH)}, 7168
        s_add_u32 s80, s80, s81
        s_lshl_b32 s81, {s(S_W)}, 11
        s_add_u32 s80, s80, s81
        ''')
        for T in range(7):
            g(f's_add_u32 s81, s80, {WS_A + T*14336}')
            g(f's_add_u32 {s(RO+2*T)}, {s(S_WS)}, s81')
            g(f's_addc_u32 {s(RO+2*T+1)}, {s(S_WS+1)}, 0')
    else:
        g(f'''
        s_mul_i32 s82, {s(S_H)}, 229376
        s_mul_i32 s83, {s(S_CQ)}, 224
        s_add_u32 s82, s82, s83
        v_bfe_u32 v4, {v(LN)}, 1, 3
        v_lshrrev_b32 v5, 4, {v(LN)}
        v_xor_b32 v4, v4, v5
        ''')
        lanemap(g, 6, [(4, 2, 896), (0, 1, 16)], lane=LN, tmp=T0)
        if w3:
            g(f'''
            v_xor_b32 v5, 4, v4
            v_min_u32 v4, 6, v4
            v_min_u32 v5, 6, v5
            v_lshl_add_u32 {v(VB)}, v4, 5, v6
            v_lshl_add_u32 {v(VB+1)}, v5, 5, v6
            s_add_u32 s82, s82, {3*7168}
            s_add_u32 {s(RB)}, {s(S_WO)}, s82
            s_addc_u32 {s(RB+1)}, {s(S_WO+1)}, 0
            ''')
            def bpart(ec):
                for pr in range(3, 8):
                    for o in range(2):
                        dma(f's_mov_b32 m0, {ec*16384 + pr*2048 + o*1024 - o*3584}', VB+(pr & 1), RB, o*3584, ('d', ec))
                    sadv(g, RB, 7168 if pr < 7 else 4*7168)
        else:
            g(f'''
            s_and_b32 s83, {s(S_W)}, 1
            s_lshl_b32 s83, s83, 2
            v_xor_b32 v4, s83, v4
            v_min_u32 v4, 6, v4
            v_lshl_add_u32 {v(VB)}, v4, 5, v6
            v_add_u32 {v(VB+1)}, 3584, {v(VB)}
            s_mul_i32 s83, {s(S_W)}, 7168
            s_add_u32 s82, s82, s83
            s_add_u32 {s(RB)}, {s(S_WO)}, s82
            s_addc_u32 {s(RB+1)}, {s(S_WO+1)}, 0
            s_lshl_b32 s84, {s(S_W)}, 11
            ''')
            def bpart(ec):
                for o in range(2):
                    dma(f's_add_u32 m0, s84, {ec*16384 + o*1024}', VB+o, RB, 0, ('d', ec))
                sadv(g, RB, 8*7168)
        lanemap(g, VRB, [(4, 2, 2048), (2, 2, 256+32), (4, 1, 128), (0, 2, 8)], lane=LN, tmp=T0)
        for T in range(1, 7): g(f'v_xor_b32 {v(VRB+T)}, {T*32}, {v(VRB)}')
        def bread(dst, ec, ka, T):
            for hi in range(2):
                g(f'ds_read_b64_tr_b16 {v(dst+2*hi,2)}, {v(VRB+T)} offset:{ec*16384 + ka*8192 + hi*1024}')
            lg.issue(('b', ec, ka, T), 2)
        g(f'''
        s_mul_i32 s80, {s(S_H)}, {2*14336}
        s_mul_i32 s81, {s(S_DH)}, 7168
        s_add_u32 s80, s80, s81
        s_lshl_b32 s81, {s(S_W)}, 11
        s_add_u32 s80, s80, s81
        s_add_u32 s80, s80, {WS_B}
        s_mul_i32 s85, {s(S_CQ)}, 7
        ''')
        for T in range(7):
            g(f'''
            s_add_u32 s81, s85, {T}
            s_lshr_b32 s83, s81, 1
            s_and_b32 s81, s81, 1
            s_lshl_b32 s83, s83, 5
            s_add_u32 s81, s81, s83
            s_mul_i32 s81, s81, 14336
            s_add_u32 s81, s81, s80
            s_add_u32 {s(RO+2*T)}, {s(S_WS)}, s81
            s_addc_u32 {s(RO+2*T+1)}, {s(S_WS+1)}, 0
            ''')
    def apart(ec):
        for rt in range(NRT):
            for be in range(2):
                dma(f's_add_u32 m0, {s(S_LA)}, {(ec % 3)*8192 + rt*2048 + be*1024 - ec*128}', VA0+be, RA+2*rt, ec*128, ('d', ec))
    for ec in range(3):
        bpart(ec); apart(ec)
    bpart(3)
    VAR = T0+2
    g(f'v_add_u32 {v(VAR)}, {s(S_LA)}, {v(VRA)}')
    g(f'v_xor_b32 {v(VAR+1)}, 64, {v(VAR)}')
    for i in range(28*NRT): g(f'v_mov_b32 {v(ACC+i)}, 0')
    if w3:
        g(f'''
        s_lshr_b32 s80, s2, 2
        s_mul_i32 s80, s80, {32*896}
        s_bfe_u32 s81, s2, 0x10001
        s_mul_i32 s81, s81, {4*896}
        s_add_u32 s80, s80, s81
        s_and_b32 s81, s2, 1
        s_mul_i32 s81, s81, 448
        s_add_u32 s80, s80, s81
        s_add_u32 {s(RX)}, {s(S_X)}, s80
        s_addc_u32 {s(RX+1)}, {s(S_X+1)}, 0
        s_add_u32 {s(RX+2)}, {s(S_BX)}, s80
        s_addc_u32 {s(RX+3)}, {s(S_BX+1)}, 0
        ''')
        VXA, VXB = T0+4, T0+5
        lanemap(g, VXA, [(2, 2, 8*896), (0, 2, 896), (5, 1, 32), (4, 1, 8)], lane=LN, tmp=T0)
        lanemap(g, VXB, [(2, 2, 8*896), (0, 2, 896), (4, 2, 16)], lane=LN, tmp=T0)
    bslot = 0
    for ec in range(4):
        vm.wait(('d', ec))
        g('s_barrier')
        units = [(ka, T) for ka in range(2) for T in range(7)]
        LOOK = NBOP - 1
        slots = {}
        def issue(u):
            nonlocal bslot
            ka, T = units[u]
            if T == 0:
                for rt in range(NRT):
                    g(f'ds_read_b128 {v(AOP+16*ka+4*rt,4)}, {v(VAR+ka)} offset:{(ec % 3)*8192 + rt*2048}')
                    lg.issue(('a', ec, ka))
            slots[u] = BOP + 4*bslot; bslot = (bslot + 1) % NBOP
            bread(slots[u], ec, ka, T)
        for u in range(LOOK): issue(u)
        for u, (ka, T) in enumerate(units):
            lg.wait(('b', ec, ka, T))
            for rt in range(NRT):
                g(MF(v(ACC+4*(rt*7+T), 4), v(AOP+16*ka+4*rt, 4), v(slots[u], 4)))
                if rt == 0 and u + LOOK < 14: issue(u + LOOK)
            if ec == 0 and u == 7: apart(3)
            if ec == 0 and u == 8 and w3:
                for i in range(7):
                    for p in range(2):
                        g(f'global_load_dwordx2 {v(IM+4*i+2*p,2)}, {v(VXA)}, {s(RX,2)} offset:{64*i+16*p}')
                    g(f'global_load_dwordx4 {v(IM+28+4*i,4)}, {v(VXB)}, {s(RX+2,2)} offset:{64*i}')
                    vm.issue('im', 3)
    g('s_nop 7')
    if not isB: g(f's_mov_b32 s80, {SCALE}')
    for T in range(7):
        for b in range(NRT // 2):
            r0, r1 = ACC+4*((2*b)*7+T), ACC+4*((2*b+1)*7+T)
            if not isB:
                for r in (r0, r1):
                    for i in range(4): g(f'v_mul_f32 {v(r+i)}, s80, {v(r+i)}')
            g(f'v_cvt_pk_bf16_f32 {v(r0)}, {v(r0)}, {v(r0+1)}')
            g(f'v_cvt_pk_bf16_f32 {v(r0+1)}, {v(r0+2)}, {v(r0+3)}')
            g(f'v_cvt_pk_bf16_f32 {v(r0+2)}, {v(r1)}, {v(r1+1)}')
            g(f'v_cvt_pk_bf16_f32 {v(r0+3)}, {v(r1+2)}, {v(r1+3)}')
            g(f'global_store_dwordx4 {v(VL)}, {v(r0,4)}, {s(RO+2*T,2)} offset:{1024*b}')
            vm.issue('st')
    if w3:
        sbase(g, RX, S_WS, WS_XA + 4096, 2, 7168, 80)
        sbase(g, RX+2, RX, WS_XB - WS_XA)
        vm.wait('im')
        for i in range(7):
            g(f'v_swap_b32 {v(IM+4*i+1)}, {v(IM+4*i+2)}')
            g(f'global_store_dwordx4 {v(VL)}, {v(IM+4*i,4)}, {s(RX,2)} offset:{1024*i-4096}')
            g(f'global_store_dwordx4 {v(VL)}, {v(IM+28+4*i,4)}, {s(RX+2,2)} offset:{1024*i-4096}')
        g('s_cmp_lg_u32 s2, 63')
        g('s_cbranch_scc1 P_end')
        lanemap(g, VXA, [(4, 2, 32), (1, 3, 896), (0, 1, 16)], lane=LN, tmp=T0)
        for i in range(7):
            g(f'global_load_dwordx4 {v(ACC+4*i,4)}, {v(VXA)}, {s(S_MEM0,2)} offset:{128*i}')
        sbase(g, RX, S_WS, WS_MEM + 4096)
        g('s_waitcnt vmcnt(0)')
        for i in range(7):
            g(f'v_min_u32 {v(ACC+4*i)}, 0xfffffffe, {v(ACC+4*i)}')
            g(f'v_min_u32 {v(ACC+4*i+2)}, 0xfffffffe, {v(ACC+4*i+2)}')
            g(f'global_store_dwordx4 {v(VL)}, {v(ACC+4*i,4)}, {s(RX,2)} offset:{1024*i-4096}')
    g('s_endpgm')
```

```python
from gen import *
from gen_prep import Cnt, MF

LOG2E = 0x3fb8aa3b
def MF0(d, a, b): return f'v_mfma_f32_16x16x32_bf16 {d}, {a}, {b}, 0'
def cvt(d, x, y): return f'v_cvt_pk_bf16_f32 {v(d)}, {v(x)}, {v(y)}'
def pack8(g, r0, r1):
    g(cvt(r0, r0, r0+1)); g(cvt(r0+1, r0+2, r0+3)); g(cvt(r0+2, r1, r1+1)); g(cvt(r0+3, r1+2, r1+3))

XR, ACC = 0, 128
VS = 240
LN, T0, T1, T2, VZ, VJ = 245, 246, 247, 248, 249, 250
S_G, S_R = 40, 41
SX, SF, SO = 42, 44, 46

def flagstore(g, sf, val, vt=T0, vz=VZ):
    g(f'v_mov_b32 {v(vt)}, {val}')
    g('s_mov_b64 exec, 1')
    g(f'global_store_dword {v(vz)}, {v(vt)}, {s(sf,2)} sc1')
    g('s_mov_b64 exec, -1')

def pollflags(g, name, vaddr, sa, thr, vt, sleep=2):
    g.lab(name)
    g(f'global_load_dword {v(vt)}, {v(vaddr)}, {s(sa,2)} sc1')
    spin_guard(g)
    g('s_waitcnt vmcnt(0)')
    g(f'v_cmp_ge_i32 vcc, {thr}, {v(vt)}')
    g(f's_cbranch_vccz {name}_ok')
    g(f's_sleep {sleep}')
    g(f's_branch {name}')
    g.lab(name + '_ok')

def gemm4(g, name, NK, wA, stride, nrounds, epi, E, flag=True, sc=''):
    NB = 2*NK
    vm = Cnt(g, 'vmcnt', 63)
    def ld(r, b):
        g(f'global_load_dwordx4 {v(XR+4*b,4)}, {v(VS+(b>>3))}, {s(SX,2)} offset:{(b&7)*1024-4096}{sc}')
        vm.issue(('ld', r, b))
    def dummy(tag):
        g(f'global_load_dword {v(VJ)}, {v(VS)}, {s(SX,2)}'); vm.issue(tag)
    order = [(ab*NK + kb) for kb in range(NK) for ab in range(2)]
    FP = NB // 2
    for i, b in enumerate(order):
        ld(0, b)
        if flag and i == FP: dummy('f')
    for i in range(E): dummy(('st', 0))
    sadv(g, SX, stride)
    g(f's_mov_b32 {s(S_R)}, 0')
    g.lab(name)
    for i, b in enumerate(order):
        ab, kb = b // NK, b % NK
        vm.wait(('ld', 0, b))
        for t in range(4):
            W = a_((t*NK+kb)*4, 4); X = v(XR+4*b, 4); D = v(ACC+16*ab+4*t, 4)
            f = MF0 if kb == 0 else MF
            g(f(D, W, X) if wA else f(D, X, W))
        ld(1, b)
        if flag and i == FP:
            if E: vm.wait(('st', 0))
            flagstore(g, SF, s(S_R)); vm.issue('f')
    g('s_nop 7')
    epi()
    g(f'''
    s_add_u32 {s(S_R)}, {s(S_R)}, 1
    s_cmp_lt_u32 {s(S_R)}, {nrounds-1}
    s_cselect_b32 s36, {stride}, 0
    ''')
    sadv(g, SX, 's36')
    g(f's_cmp_lt_u32 {s(S_R)}, {nrounds}')
    g(f's_cbranch_scc1 {name}')
    g('s_waitcnt vmcnt(0)')
    if flag: flagstore(g, SF, nrounds)

def worker(g):
    g.lab('L_worker')
    g(f'''
    s_sub_u32 {s(S_G)}, {s(S_ROLE)}, 32
    s_cmp_ge_u32 {s(S_G)}, 220
    s_cbranch_scc1 L_end
    s_cmp_ge_u32 {s(S_G)}, 144
    s_cbranch_scc1 L_po
    v_mov_b32 {v(LN)}, v0
    v_lshlrev_b32 {v(VS)}, 4, v0
    v_mov_b32 {v(VZ)}, 0
    ''')
    for k in range(1, 5): g(f'v_add_u32 {v(VS+k)}, {8192*k}, {v(VS)}')
    g(f's_cmp_ge_u32 {s(S_G)}, 112')
    g('s_cbranch_scc1 L_partb')
    vx(g)
    partb(g)
    g.lab('L_po')
    g(f's_cmp_ge_u32 {s(S_G)}, 192')
    g('s_cbranch_scc1 L_ocu')
    pcu(g)
    ocu(g)

def vx(g):
    S_H, S_C = 48, 49
    g(f'''
    s_and_b32 {s(S_H)}, {s(S_G)}, 15
    s_lshr_b32 {s(S_C)}, {s(S_G)}, 4
    s_lshl_b32 s36, {s(S_C)}, 6
    s_lshl_b32 s37, {s(S_H)}, 1
    s_add_u32 s36, s36, s37
    ''')
    sbase(g, 50, S_WS, WS_B + 4096, 36, 14336, 37)
    sbase(g, 52, 50, 32*14336)
    for t in range(4):
        for kb in range(14):
            o = (t & 1)*14 + kb
            g(f'global_load_dwordx4 {a_((t*14+kb)*4,4)}, {v(VS+(o>>3))}, {s(50+2*(t>>1),2)} offset:{(o&7)*1024-4096}')
    sbase(g, SX, S_WS, WS_XA + 4096, S_W, 28672, 37)
    g(f's_lshl_b32 s38, s36, 10')
    g(f's_mul_i32 s37, {s(S_W)}, {VX_STEP}')
    g(f's_add_u32 s38, s38, s37')
    sbase(g, SO, S_WS, WS_VX, 38, 1, 37)
    g(f's_mul_i32 s38, {s(S_W)}, 112')
    g(f's_add_u32 s38, s38, {s(S_G)}')
    sbase(g, SF, S_WS, WS_FLG + F_VX, 38, 4, 37)
    g('s_waitcnt vmcnt(24)')
    def epi():
        for t in range(4):
            pack8(g, ACC+4*t, ACC+16+4*t)
            g(f'global_store_dwordx4 {v(VS+4*(t>>1))}, {v(ACC+4*t,4)}, {s(SO,2)} offset:{1024*(t&1)} sc1')
        sadv(g, SO, 4*VX_STEP)
    gemm4(g, 'L_vx', 14, False, 4*28672, 16, epi, 4)
    WT, IMG, D, VIDX = 0, 56, 84, 88
    g(f'''
    s_lshr_b32 s37, {s(S_W)}, 1
    s_lshl_b32 s37, s37, 5
    s_and_b32 s38, {s(S_W)}, 1
    s_add_u32 s37, s37, s38
    s_mul_i32 s37, s37, 14336
    ''')
    sadv(g, 50, 's37')
    for kb in range(14):
        g(f'global_load_dwordx4 {v(WT+4*kb,4)}, {v(VS+(kb>>3))}, s[50:51] offset:{(kb&7)*1024-4096}')
    g(f'''
    v_and_b32 {v(T0)}, 1, {v(LN)}
    v_cmp_eq_u32 vcc, 1, {v(T0)}
    v_mov_b32 {v(VIDX)}, 0x44444444
    v_mov_b32 {v(T0)}, 0xeeeeeeee
    v_cndmask_b32 {v(VIDX)}, {v(VIDX)}, {v(T0)}, vcc
    s_lshl_b32 s36, {s(S_C)}, 1
    s_lshr_b32 s37, {s(S_W)}, 1
    s_add_u32 s36, s36, s37
    s_lshl_b32 s36, s36, 13
    s_lshr_b32 s37, {s(S_H)}, 2
    s_lshl_b32 s37, s37, 11
    s_add_u32 s36, s36, s37
    s_and_b32 s37, {s(S_W)}, 1
    s_lshl_b32 s37, s37, 10
    s_add_u32 s36, s36, s37
    s_and_b32 s37, {s(S_H)}, 3
    s_lshl_b32 s37, s37, 2
    s_add_u32 s36, s36, s37
    ''')
    sbase(g, SO, S_WS, WS_VM, 36, 1, 37)
    g(f'''
    s_lshl_b32 s36, {s(S_C)}, 2
    s_add_u32 s36, s36, {s(S_W)}
    s_lshl_b32 s36, s36, 4
    s_add_u32 s36, s36, {s(S_H)}
    ''')
    sbase(g, SF, S_WS, WS_FLG + F_VM, 36, 4, 37)
    sbase(g, SX, S_WS, WS_MEM + 4096)
    g(f's_mov_b32 {s(S_R)}, 0')
    def mld():
        for t in range(7):
            g(f'global_load_dwordx4 {v(IMG+4*t,4)}, {v(VS)}, {s(SX,2)} offset:{1024*t-4096} sc1')
    g.lab('L_vm')
    mld()
    g('s_waitcnt vmcnt(7)')
    flagstore(g, SF, s(S_R))
    for i in range(4): g(f'v_mov_b32 {v(D+i)}, 0')
    g('s_waitcnt vmcnt(1)')
    g.lab('L_vm_chk')
    for x in okchk(g, [IMG+2*i for i in range(14)], T0, 'L_vm_go'): g(x)
    g('s_sleep 2')
    mld()
    spin_guard(g)
    g('s_waitcnt vmcnt(0)')
    g('s_branch L_vm_chk')
    g.lab('L_vm_go')
    for t in range(7): g(SM(D, IMG+4*t, v(WT+8*t, 8), VIDX))
    g(f's_sub_u32 {s(SX)}, {s(SX)}, 8192')
    g(f's_subb_u32 {s(SX+1)}, {s(SX+1)}, 0')
    g(f's_add_u32 {s(S_R)}, {s(S_R)}, 1')
    g('s_nop 5')
    g(f'v_add_f32 {v(D)}, {v(D)}, {v(D+1)}')
    g(f'v_add_f32 {v(D+2)}, {v(D+2)}, {v(D+3)}')
    g(cvt(T1, D, D+2))
    g(f'global_store_dword {v(VS)}, {v(T1)}, {s(SO,2)} sc1')
    sadv(g, SO, VM_STEP)
    g(f's_cmp_lt_u32 {s(S_R)}, 64')
    g('s_cbranch_scc1 L_vm')
    g('s_waitcnt vmcnt(0)')
    flagstore(g, SF, 64)
    g('s_endpgm')

def phi(g, r, n, tmp):
    for i in range(n): g(f'v_mul_f32 {v(tmp+i)}, s37, {v(r+i)}')
    for i in range(n): g(f'v_exp_f32_e64 {v(tmp+i)}, {v(tmp+i)} clamp')
    for i in range(n): g(f'v_max_f32 {v(r+i)}, 0, {v(r+i)}')
    for i in range(n): g(f'v_add_f32 {v(r+i)}, {v(r+i)}, {v(tmp+i)}')
    for i in range(n): g(f'v_add_f32 {v(r+i)}, s38, {v(r+i)}')

def panel(g, sw, pitch, colterms, scol, cmax, NK, rowl, rowu):
    P = 144
    g(f's_lshl_b32 s36, {s(S_W)}, 2')
    g(f's_mul_i32 s37, s36, {pitch}')
    lanemap(g, T1, colterms, sconst=scol, lane=LN, tmp=T0)
    if cmax: g(f'v_min_u32 {v(T1)}, {cmax}, {v(T1)}')
    lanemap(g, T2, [(4, 2, pitch)], sconst=37, lane=LN, tmp=T0)
    g(f'v_add_u32 {v(T1)}, {v(T1)}, {v(T2)}')
    g(f's_mul_i32 s37, s36, {P}')
    lanemap(g, T2, [(4, 2, P), (0, 4, 8)], sconst=37, lane=LN, tmp=T0)
    sbase(g, 50, sw, 0)
    for p in range(28):
        g(f'global_load_dwordx2 {v(XR+2*p,2)}, {v(T1)}, s[50:51]')
        if p < 27: sadv(g, 50, 16*pitch)
    g('s_barrier')
    for p in range(28):
        g(f's_waitcnt vmcnt({27-p})')
        g(f'ds_write_b64 {v(T2)}, {v(XR+2*p,2)} offset:{16*P*p}')
    g(f'ds_write_b64 {v(T2)}, {v(XR+54,2)} offset:{16*P*28}')
    lanemap(g, T1, [(4, 2, rowl*P), (2, 2, P), (0, 2, 8)], lane=LN, tmp=T0)
    g('s_waitcnt lgkmcnt(0)')
    g('s_barrier')
    n = 0
    for t in range(4):
        for kb in range(NK):
            for hi in range(2):
                g(f'ds_read_b64_tr_b16 {a_((t*NK+kb)*4+2*hi,2)}, {v(T1)} offset:{rowu(kb,hi)*P + 32*t}')
                n += 1
                if n % 8 == 0: g('s_waitcnt lgkmcnt(8)')
    g('s_waitcnt lgkmcnt(0)')

def partb(g):
    S_B = 48
    KV, ONE, TM = 160, 184, 192
    g.lab('L_partb')
    g(f's_sub_u32 {s(S_B)}, {s(S_G)}, 112')
    consts = f's_mov_b32 s37, {LOG2E}\ns_mov_b32 s38, 0x358637bd'
    g(f's_lshr_b32 s39, {s(S_B)}, 1')
    g(f's_mul_i32 s39, s39, 56')
    g(f's_add_u32 s39, s39, 896')
    panel(g, S_WQKV, 2688, [(3, 1, 896), (2, 1, 32), (0, 2, 8)], 39, 2680, 14, 8, lambda kb, hi: 32*kb+4*hi)
    g(f's_and_b32 s36, {s(S_B)}, 1')
    g(f's_lshl_b32 s36, s36, 5')
    g(f's_add_u32 s36, s36, {s(S_W)}')
    sbase(g, SX, S_WS, WS_XB + 4096, 36, 28672, 37)
    for i in range(24): g(f'v_mov_b32 {v(KV+i)}, 0')
    for i in range(4): g(f'v_mov_b32 {v(ONE+i)}, 0x3f803f80')
    def epi1():
        g(consts)
        for ab in range(2): phi(g, ACC+16*ab, 8, TM)
        for t in range(4): pack8(g, ACC+4*t, ACC+16+4*t)
        g('s_nop 1')
        for td in range(2):
            for te in range(3):
                g(MF(v(KV+4*(2*te+td), 4), v(ACC+4*td, 4), v(ACC+8+4*te if te < 2 else ONE, 4)))
    gemm4(g, 'L_b1', 14, False, 4*28672, 8, epi1, 0, flag=False)
    g('s_barrier')
    g(f's_mul_i32 s36, {s(S_W)}, 6144')
    g(f'v_add_u32 {v(T1)}, s36, {v(VS)}')
    for k in range(6): g(f'ds_write_b128 {v(T1)}, {v(KV+4*k,4)} offset:{1024*k}')
    g(f's_lshl_b32 s36, {s(S_W)}, 10')
    g(f'v_add_u32 {v(T1)}, s36, {v(VS)}')
    sbase(g, SO, S_WS, WS_KV, S_B, 6144, 37)
    g(f's_lshl_b32 s36, {s(S_B)}, 2')
    g(f's_add_u32 s36, s36, {s(S_W)}')
    sbase(g, SF, S_WS, WS_FLG + F_KV, 36, 4, 37)
    g('s_waitcnt lgkmcnt(0)')
    g('s_barrier')
    for rep in range(2):
        if rep:
            g(f's_cmp_ge_u32 {s(S_W)}, 2')
            g('s_cbranch_scc1 L_b1_done')
            g(f'v_add_u32 {v(T1)}, 4096, {v(T1)}')
        R = XR + 16*rep
        for k in range(4): g(f'ds_read_b128 {v(R+4*k,4)}, {v(T1)} offset:{6144*k}')
        g('s_waitcnt lgkmcnt(0)')
        for k in range(1, 4):
            for i in range(4): g(f'v_add_f32 {v(R+i)}, {v(R+i)}, {v(R+4*k+i)}')
        g(f'global_store_dwordx4 {v(T1)}, {v(R,4)}, {s(SO,2)} sc1')
    g.lab('L_b1_done')
    g('s_waitcnt vmcnt(0)')
    flagstore(g, SF, 1)
    g(f's_and_b32 s49, {s(S_B)}, 7')
    g(f's_mul_i32 s39, s49, 112')
    panel(g, S_WQKV, 2688, [(3, 1, 56), (2, 1, 32), (0, 2, 8)], 39, 0, 14, 8, lambda kb, hi: 32*kb+4*hi)
    sbase(g, 50, S_WS, WS_FLG + F_KV, 49, 64, 37)
    lanemap(g, T1, [(0, 4, 4)], lane=LN, tmp=T0)
    pollflags(g, 'L_b2_w', T1, 50, 0, T2)
    sbase(g, 50, S_WS, WS_KV + 4096, 49, 4*6144, 37)
    for o in range(24):
        g(f'global_load_dwordx4 {v(XR+4*o,4)}, {v(VS+(o>>3))}, s[50:51] offset:{(o&7)*1024-4096} sc1')
    g(f'''
    v_and_b32 {v(T0)}, 15, {v(LN)}
    v_cmp_gt_u32 s[52:53], 12, {v(T0)}
    v_cmp_gt_u32 s[54:55], 48, {v(LN)}
    s_waitcnt vmcnt(0)
    ''')
    for u in range(2):
        for te in range(3):
            A = XR + 48*u + 8*te; D = KV + 12*u + 4*te
            for i in range(8): g(f'v_add_f32 {v(A+i)}, {v(A+i)}, {v(A+24+i)}')
            for i in range(4): g(cvt(D+i, A+2*i, A+2*i+1))
            for i in (2, 3): g(f'v_cndmask_b32_e64 {v(D+i)}, 0, {v(D+i)}, s[54:55]')
            if te == 1:
                for i in range(4): g(f'v_cndmask_b32_e64 {v(D+i)}, 0, {v(D+i)}, s[52:53]')
    g(f'''
    s_lshr_b32 s36, {s(S_B)}, 3
    s_lshl_b32 s36, s36, 4
    s_add_u32 s36, s36, {s(S_W)}
    ''')
    sbase(g, SX, S_WS, WS_XB + 4096, 36, 28672, 37)
    g(f's_lshl_b32 s38, s36, 4')
    g(f's_add_u32 s38, s38, s49')
    sbase(g, SO, S_WS, WS_OB, 38, 2048, 37)
    g(f'''
    s_lshr_b32 s36, {s(S_B)}, 3
    s_lshl_b32 s36, s36, 2
    s_add_u32 s36, s36, {s(S_W)}
    s_lshl_b32 s36, s36, 3
    s_add_u32 s36, s36, s49
    ''')
    sbase(g, SF, S_WS, WS_FLG + F_O, 36, 4, 37)
    def epi2():
        g(consts)
        for k in range(4):
            phi(g, ACC+8*k, 8, TM); pack8(g, ACC+8*k, ACC+8*k+4)
        g('s_nop 1')
        for k in range(4):
            for te in range(3):
                g(MF0(v(TM+12*k+4*te, 4), v(KV+12*(k & 1)+4*te, 4), v(ACC+8*k, 4)))
        g('s_nop 7')
        for k in range(4):
            g(f'v_add_f32 {v(TM+12*k+8)}, s38, {v(TM+12*k+8)}')
            g(f'v_rcp_f32 {v(TM+12*k+8)}, {v(TM+12*k+8)}')
        for k in range(4):
            R = TM+12*k
            for i in range(8): g(f'v_mul_f32 {v(R+i)}, {v(R+i)}, {v(R+8)}')
            pack8(g, R, R+4)
            g(f'global_store_dwordx4 {v(VS+2*(k>>1))}, {v(R,4)}, {s(SO,2)} offset:{1024*(k&1)} sc1')
        sadv(g, SO, 4*32768)
    gemm4(g, 'L_b2', 14, True, 4*28672, 4, epi2, 4)
    g(f'''
    s_cmp_ge_u32 {s(S_B)}, 28
    s_cbranch_scc1 L_end
    s_mul_i32 s49, {s(S_B)}, 37
    s_lshr_b32 s49, s49, 8
    s_mul_i32 s39, s49, 7
    s_sub_u32 s39, {s(S_B)}, s39
    s_lshl_b32 s39, s39, 7
    ''')
    panel(g, S_BWO, 896, [(3, 1, 64), (2, 1, 8), (0, 2, 16)], 39, 0, 16, 4, lambda kb, hi: 28*kb+16*hi)
    g(f's_lshl_b32 s36, s49, 2')
    g(f's_add_u32 s36, s36, {s(S_W)}')
    sbase(g, 50, S_WS, WS_FLG + F_O, 36, 32, 37)
    lanemap(g, T1, [(0, 3, 4)], lane=LN, tmp=T0)
    pollflags(g, 'L_b3_w', T1, 50, 3, T2)
    g(f's_lshl_b32 s36, s49, 4')
    g(f's_add_u32 s36, s36, {s(S_W)}')
    sbase(g, SX, S_WS, WS_OB + 4096, 36, 32768, 37)
    sbase(g, SO, S_OUT, 896, 36, 32*1792, 37)
    sadv(g, SO, 's39')
    lanemap(g, T1, [(2, 2, 8*1792), (0, 2, 1792), (4, 2, 16)], lane=LN, tmp=T0)
    g(f'v_add_u32 {v(T2)}, {4*1792}, {v(T1)}')
    def epi3():
        for k in range(4):
            pack8(g, ACC+8*k, ACC+8*k+4)
            g(f'global_store_dwordx4 {v(T1+(k>>1))}, {v(ACC+8*k,4)}, {s(SO,2)} offset:{64*(k&1)}')
        sadv(g, SO, 4*32*1792)
    gemm4(g, 'L_b3', 16, True, 4*32768, 4, epi3, 4, flag=False, sc=' sc1')
    g('s_endpgm')

def pcu(g):
    AC, XQ, QP, KX = 0, 28, 56, 84
    VL, LNp, U0, U1, U2, U3, U4, VZp = range(112, 120)
    S_H, S_S = 48, 49
    SXI, SK, SM_, SPX, SFP = 42, 44, 46, 52, 54
    LSX, LSM = 256, 256 + 16384
    g(f'''
    v_mov_b32 {v(LNp)}, v0
    v_lshlrev_b32 {v(VL)}, 4, v0
    v_mov_b32 {v(VZp)}, 0
    s_sub_u32 s36, {s(S_G)}, 144
    s_and_b32 {s(S_H)}, s36, 15
    s_lshr_b32 {s(S_S)}, s36, 4
    s_lshl_b32 s36, {s(S_H)}, 2
    s_add_u32 s36, s36, {s(S_W)}
    ''')
    sbase(g, 50, S_WS, WS_A, 36, 49*2048, 37)
    for b in range(49):
        for h in range(2):
            g(f'global_load_dwordx4 {blk(b, 4*h, 4)}, {v(VL)}, s[50:51] offset:{(b&1)*2048 + h*1024}')
        if b & 1: sadv(g, 50, 4096)
        if b >= 24: g('s_waitcnt vmcnt(48)')
    sbase(g, SXI, S_WS, WS_XA + 4096, S_S, 28672, 37)
    sbase(g, SK, S_X, 0, S_S, 32*896, 37)
    g(f's_mul_i32 s36, {s(S_W)}, 224')
    sadv(g, SK, 's36')
    g(f's_mul_i32 s36, {s(S_W)}, 1792')
    g(f's_lshl_b32 s37, {s(S_S)}, 13')
    g(f's_sub_u32 s36, s36, s37')
    g(f's_add_u32 s36, s36, {WS_MEM}')
    sbase(g, SM_, S_WS, 's36')
    g(f's_mul_i32 s36, {s(S_W)}, 20480')
    g(f's_lshl_b32 s37, {s(S_H)}, 10')
    g(f's_add_u32 s36, s36, s37')
    g(f's_add_u32 s36, s36, {WS_PX}')
    sbase(g, SPX, S_WS, 's36', S_S, PX_STEP, 37)
    g(f'''
    s_lshl_b32 s36, {s(S_S)}, 1
    s_add_u32 s36, s36, {s(S_W)}
    s_lshl_b32 s36, s36, 4
    s_add_u32 s36, s36, {s(S_H)}
    ''')
    sbase(g, SFP, S_WS, WS_FLG + F_P, 36, 4, 37)
    vm = Cnt(g, 'vmcnt', 63)
    g.lab('L_p_loop')
    def xl(i):
        g(f'global_load_dwordx4 {v(XQ+4*(i%7),4)}, {v(VL)}, {s(SXI,2)} offset:{(i%7)*1024-4096}')
        vm.issue(('x', i))
        if i % 7 == 6: sadv(g, SXI, 7168 if i < 27 else 7168 + 2*28672)
    for i in range(7): xl(i)
    rows = [(2, 2, 8*896), (0, 2, 896)]
    lanemap(g, U0, rows + [(4, 2, 32)], lane=LNp, tmp=U4)
    lanemap(g, U1, rows + [(4, 2, 16)], lane=LNp, tmp=U4)
    lanemap(g, U2, rows + [(4, 2, 8)], lane=LNp, tmp=U4)
    for kt in range(2):
        K = KX + 14*kt; o = 3584*kt
        g(f'global_load_dwordx4 {v(K,4)}, {v(U0)}, {s(SK,2)} offset:{o}')
        g(f'global_load_dwordx4 {v(K+4,4)}, {v(U0)}, {s(SK,2)} offset:{o+16}')
        g(f'global_load_dwordx4 {v(K+8,4)}, {v(U1)}, {s(SK,2)} offset:{o+128}')
        g(f'global_load_dwordx2 {v(K+12,2)}, {v(U2)}, {s(SK,2)} offset:{o+192}')
        vm.issue('k', 4)
    sadv(g, SK, 3*32*896)
    g(f's_lshl_b32 s36, {s(S_W)}, 12')
    g(f'v_add_u32 {v(U0)}, s36, {v(VL)}')
    def smm(D, K, Q):
        g(MF0(v(D, 4), v(K, 4), v(Q, 4)))
        return [MF(v(D, 4), v(K+4, 4), v(Q+4, 4)), MF(v(D, 4), v(K+8, 4), v(Q+8, 4)),
                f'v_mfma_f32_16x16x16_bf16 {v(D,4)}, {v(K+12,2)}, {v(Q+12,2)}, {v(D,4)}']
    for tt in range(2):
        for kb in range(14):
            i = 14*tt + kb
            vm.wait(('x', i))
            for tau in range(7):
                g((MF0 if kb == 0 else MF)(v(AC+4*tau, 4), blk(tau*7+(kb >> 1), 4*(kb & 1), 4), v(XQ+4*(i % 7), 4)))
            if i + 7 < 28: xl(i+7)
        g('s_nop 7')
        Q = QP + 14*tt
        for r in range(4):
            for th in range(2): g(cvt(Q+4*(r >> 1)+2*th+(r & 1), AC+8*th+r, AC+8*th+4+r))
        for r in range(4): g(cvt(Q+8+r, AC+16+r, AC+20+r))
        g(cvt(Q+12, AC+24, AC+25)); g(cvt(Q+13, AC+26, AC+27))
        vm.wait('k')
        g('s_nop 1')
        L0 = smm(AC, KX, Q); L1 = smm(AC+4, KX+14, Q)
        for a, b in zip(L0, L1): g(a); g(b)
        g('s_nop 7')
        for kt in range(2): g(f'ds_write_b128 {v(U0)}, {v(AC+4*kt,4)} offset:{LSX+2048*tt+1024*kt}')
    keyt = [(2, 2, 64), (0, 1, 32)]
    lanemap(g, U0, keyt + [(4, 2, 256)], lane=LNp, tmp=U4)
    lanemap(g, U1, keyt + [(5, 1, 256), (4, 1, 16)], lane=LNp, tmp=U4)
    lanemap(g, U2, keyt + [(4, 2, 8)], lane=LNp, tmp=U4)
    def mk():
        g(f'global_load_dwordx4 {v(KX,4)}, {v(U0)}, {s(SM_,2)} sc1')
        g(f'global_load_dwordx4 {v(KX+4,4)}, {v(U0)}, {s(SM_,2)} offset:16 sc1')
        g(f'global_load_dwordx4 {v(KX+8,4)}, {v(U1)}, {s(SM_,2)} offset:1024 sc1')
        g(f'global_load_dwordx2 {v(KX+12,2)}, {v(U2)}, {s(SM_,2)} offset:1536 sc1')
    mk()
    g(f's_cmp_ge_u32 {s(S_W)}, 2')
    g('s_waitcnt lgkmcnt(0)')
    g('s_barrier')
    g('s_cbranch_scc1 L_p_chk0')
    g(f's_lshl_b32 s36, {s(S_W)}, 11')
    g(f'v_add_u32 {v(U3)}, s36, {v(VL)}')
    dst = [AC, XQ, XQ+8, XQ+16]
    for k in range(4):
        for kt in range(2): g(f'ds_read_b128 {v(dst[k]+4*kt,4)}, {v(U3)} offset:{LSX+4096*k+1024*kt}')
    g(f's_lshl_b32 s36, {s(S_W)}, 2')
    lanemap(g, U3, [(2, 2, 8), (0, 2, 1)], sconst=36, lane=LNp, tmp=U4)
    g(f'v_lshrrev_b32 {v(U4)}, 4, {v(LNp)}')
    g(f'v_lshlrev_b32 {v(U4)}, 3, {v(U4)}')
    g(f'v_sub_u32 {v(U3)}, {v(U3)}, {v(U4)}')
    g(f'v_mov_b32 {v(U4)}, 0xf149f2ca')
    g('s_waitcnt lgkmcnt(0)')
    for k in range(1, 4):
        for i in range(8): g(f'v_add_f32 {v(AC+i)}, {v(AC+i)}, {v(dst[k]+i)}')
    for i in range(8):
        g(f'v_cmp_le_i32 vcc, {i}, {v(U3)}')
        g('s_nop 1')
        g(f'v_cndmask_b32 {v(AC+i)}, {v(U4)}, {v(AC+i)}, vcc')
    M = AC+16
    g(f'v_max3_f32 {v(M)}, {v(AC)}, {v(AC+1)}, {v(AC+2)}')
    g(f'v_max3_f32 {v(M)}, {v(M)}, {v(AC+3)}, {v(AC+4)}')
    g(f'v_max3_f32 {v(M)}, {v(M)}, {v(AC+5)}, {v(AC+6)}')
    g(f'v_max_f32 {v(M)}, {v(M)}, {v(AC+7)}')
    g.lab('L_p_chk0')
    g('s_waitcnt vmcnt(0)')
    for x in okchk(g, [KX+2*i for i in range(7)], U4, 'L_p_go'): g(x)
    g('s_sleep 2')
    mk()
    spin_guard(g)
    g('s_branch L_p_chk0')
    g.lab('L_p_go')
    L0 = smm(AC+8, KX, QP); L1 = smm(AC+12, KX, QP+14)
    for a, b in zip(L0, L1): g(a); g(b)
    g(f's_lshl_b32 s36, {s(S_W)}, 10')
    g(f'v_lshl_add_u32 {v(U0)}, {v(LNp)}, 3, s36')
    g(f's_sub_u32 {s(SM_)}, {s(SM_)}, {3*8192}')
    g(f's_subb_u32 {s(SM_+1)}, {s(SM_+1)}, 0')
    g('s_nop 4')
    for tt in range(2): g(f'ds_write_b64 {v(U0)}, {v(AC+8+4*tt,2)} offset:{LSM+512*tt}')
    g(f's_cmp_ge_u32 {s(S_W)}, 2')
    g('s_waitcnt lgkmcnt(0)')
    g('s_barrier')
    g('s_cbranch_scc1 L_p_next')
    g(f's_lshl_b32 s36, {s(S_W)}, 9')
    g(f'v_lshl_add_u32 {v(U0)}, {v(LNp)}, 3, s36')
    for k in range(4): g(f'ds_read_b64 {v(AC+8+2*k,2)}, {v(U0)} offset:{LSM+1024*k}')
    g(f'''
    s_lshr_b32 s36, {s(S_H)}, 2
    s_add_u32 s36, s36, 16
    s_sub_u32 s36, s36, {s(S_H)}
    s_lshl_b32 s36, s36, 10
    s_and_b32 s37, {s(S_H)}, 3
    s_lshl_b32 s37, s37, 2
    s_add_u32 s36, s36, s37
    v_add_u32 {v(U1)}, s36, {v(VL)}
    s_waitcnt lgkmcnt(0)
    ''')
    for i in range(2):
        g(f'v_add_f32 {v(AC+8+i)}, {v(AC+8+i)}, {v(AC+10+i)}')
        g(f'v_add_f32 {v(AC+12+i)}, {v(AC+12+i)}, {v(AC+14+i)}')
    for i in range(2): g(f'v_add_f32 {v(AC+8+i)}, {v(AC+8+i)}, {v(AC+12+i)}')
    g(f'v_max3_f32 {v(M)}, {v(M)}, {v(AC+8)}, {v(AC+9)}')
    def allred(op):
        for sw in ('32', '16'):
            g(f'v_mov_b32 {v(M+1)}, {v(M)}')
            g('s_nop 1')
            g(f'v_permlane{sw}_swap_b32 {v(M)}, {v(M+1)}')
            g(f'v_{op}_f32 {v(M)}, {v(M)}, {v(M+1)}')
    allred('max')
    for i in range(10): g(f'v_sub_f32 {v(AC+i)}, {v(AC+i)}, {v(M)}')
    for i in range(10): g(f'v_exp_f32 {v(AC+i)}, {v(AC+i)}')
    g('s_nop 0')
    g(f'v_add_f32 {v(M)}, {v(AC)}, {v(AC+1)}')
    for i in range(2, 10): g(f'v_add_f32 {v(M)}, {v(M)}, {v(AC+i)}')
    allred('add')
    g(f'v_rcp_f32 {v(M)}, {v(M)}')
    g('s_nop 0')
    for i in range(10): g(f'v_mul_f32 {v(AC+i)}, {v(AC+i)}, {v(M)}')
    pack8(g, AC, AC+4)
    g(cvt(AC+8, AC+8, AC+9))
    g(f'global_store_dwordx4 {v(VL)}, {v(AC,4)}, {s(SPX,2)} sc1')
    g(f'global_store_dword {v(U1)}, {v(AC+8)}, {s(SPX,2)} sc1')
    g(f's_add_u32 s36, {s(S_S)}, 1')
    g('s_waitcnt vmcnt(0)')
    flagstore(g, SFP, 's36', U0, VZp)
    g.lab('L_p_next')
    sadv(g, SPX, 3*PX_STEP)
    g(f'''
    s_add_u32 {s(S_S)}, {s(S_S)}, 3
    s_cmp_lt_u32 {s(S_S)}, 64
    s_cbranch_scc1 L_p_loop
    s_endpgm
    ''')

def ocu(g):
    VX, PX, PM, VM, AC = 0, 32, 64, 72, 80
    VL, LNo, VF0, VFM, VF, VG, RF, RG, VO, VW, VR, U0, VL2 = range(100, 113)
    S_J, S_S, S_C3, S_N = 48, 49, 56, 57
    SVX, SPX, SVM, SFL, SOU = 42, 44, 46, 52, 54
    g.lab('L_ocu')
    g(f'''
    v_mov_b32 {v(LNo)}, v0
    v_lshlrev_b32 {v(VL)}, 4, v0
    v_add_u32 {v(VL2)}, 20480, {v(VL)}
    s_sub_u32 {s(S_J)}, {s(S_G)}, 192
    s_cmp_ge_u32 {s(S_J)}, 14
    s_cselect_b32 {s(S_S)}, 1, 0
    s_cselect_b32 s36, 14, 0
    s_sub_u32 {s(S_J)}, {s(S_J)}, s36
    s_mov_b32 {s(S_C3)}, {s(S_S)}
    s_lshl_b32 s36, {s(S_J)}, 2
    s_add_u32 s36, s36, {s(S_W)}
    s_lshl_b32 s38, s36, 13
    s_add_u32 s38, s38, {WS_VX + 4096}
    s_lshl_b32 s39, s36, 11
    s_add_u32 s39, s39, {WS_VM}
    ''')
    sbase(g, SVX, S_WS, 's38', S_S, VX_STEP, 37)
    sbase(g, SVM, S_WS, 's39', S_S, VM_STEP, 37)
    g(f's_lshl_b32 s38, {s(S_W)}, 12')
    g(f's_add_u32 s38, s38, {WS_PX}')
    sbase(g, SPX, S_WS, 's38', S_S, PX_STEP, 37)
    sbase(g, SFL, S_WS, WS_FLG)
    g(f'''
    s_lshl_b32 s36, {s(S_J)}, 7
    s_add_u32 s36, s36, {F_VM}
    v_mov_b32 {v(VF0)}, s36
    v_mov_b32 {v(U0)}, {F_P - 128}
    v_cmp_gt_u32 vcc, 32, {v(LNo)}
    v_mov_b32 {v(VFM)}, 128
    s_nop 0
    v_cndmask_b32 {v(VF0)}, {v(U0)}, {v(VF0)}, vcc
    v_cndmask_b32_e64 {v(VFM)}, {v(VFM)}, 0, vcc
    v_lshl_add_u32 {v(VF0)}, {v(LNo)}, 2, {v(VF0)}
    s_mul_i32 s38, {s(S_W)}, 3072
    s_sub_u32 s38, {16384}, s38
    v_add_u32 {v(U0)}, s38, {v(VL)}
    v_mov_b32 {v(PM)}, 0
    ''')
    VPM = 113
    g(f'v_mov_b32 {v(VPM)}, {v(U0)}')
    g(f'v_add_u32 {v(VPM+1)}, 20480, {v(U0)}')
    g(f'''
    s_lshr_b32 s36, {s(S_W)}, 1
    s_mul_i32 s36, s36, {4*1792}
    s_and_b32 s37, {s(S_W)}, 1
    s_lshl_b32 s37, s37, 5
    s_add_u32 s36, s36, s37
    s_lshl_b32 s37, {s(S_J)}, 6
    s_add_u32 s36, s36, s37
    ''')
    lanemap(g, VO, [(2, 2, 8*1792), (0, 2, 1792), (4, 2, 8)], sconst=36, lane=LNo, tmp=U0)
    sbase(g, SOU, S_OUT, 0, S_S, 32*1792, 37)
    g(f's_lshl_b32 s36, {s(S_W)}, 12')
    g(f'v_add_u32 {v(VW)}, s36, {v(VL)}')
    g(f's_lshl_b32 s36, {s(S_W)}, 10')
    g(f'v_add_u32 {v(VR)}, s36, {v(VL)}')
    VG0 = 115
    g(f's_lshr_b32 s36, {s(S_J)}, 1')
    g(f's_lshl_b32 s36, s36, 6')
    lanemap(g, VG0, [(0, 4, 4)], const=F_VX, sconst=36, lane=LNo, tmp=U0)
    def gaddr(sn):
        g(f's_and_b32 s36, {s(sn)}, 3')
        g(f's_mul_i32 s36, s36, 448')
        g(f'v_add_u32 {v(VG)}, s36, {v(VG0)}')
        g(f's_lshr_b32 s58, {s(sn)}, 2')
    def vxl():
        for b in range(8):
            g(f'global_load_dwordx4 {v(VX+4*b,4)}, {v(VL)}, {s(SVX,2)} offset:{1024*b-4096} sc1')
    gaddr(S_S)
    pollflags(g, 'L_o_w0', VG, SFL, 's58', RG)
    vxl()
    g.lab('L_o_loop')
    g(f'''
    s_add_u32 {s(S_N)}, {s(S_S)}, 2
    s_cmp_lt_u32 {s(S_N)}, 64
    s_cselect_b32 {s(S_N)}, {s(S_N)}, {s(S_S)}
    s_cselect_b32 s36, {2*VX_STEP}, 0
    ''')
    sadv(g, SVX, 's36')
    gaddr(S_N)
    g(f'v_mad_u32_u24 {v(VF)}, {v(VFM)}, {s(S_C3)}, {v(VF0)}')
    g(f'global_load_dword {v(RG)}, {v(VG)}, {s(SFL,2)} sc1')
    pollflags(g, 'L_o_w', VF, SFL, s(S_S), RF, 1)
    for tt in range(2):
        for q in range(4):
            g(f'global_load_dwordx4 {v(PX+16*tt+4*q,4)}, {v(VL2 if tt else VL)}, {s(SPX,2)} offset:{1024*q} sc1')
    for tt in range(2): g(f'global_load_dwordx4 {v(PM+4*tt,4)}, {v(VPM+tt)}, {s(SPX,2)} sc1')
    for t in range(2): g(f'global_load_dwordx4 {v(VM+4*t,4)}, {v(VL)}, {s(SVM,2)} offset:{1024*t} sc1')
    for tt in range(2):
        for q in range(4):
            g(f's_waitcnt vmcnt({11-4*tt-q})')
            for t in range(2):
                g((MF0 if q == 0 else MF)(v(AC+8*tt+4*t, 4), v(VX+8*q+4*t, 4), v(PX+16*tt+4*q, 4)))
    g('s_waitcnt vmcnt(0)')
    for tt in range(2):
        for t in range(2): g(MF(v(AC+8*tt+4*t, 4), v(VM+4*t, 4), v(PM+4*tt, 4)))
    g(f'v_cmp_ge_i32 vcc, s58, {v(RG)}')
    g('s_cbranch_vccz L_o_w1_ok')
    pollflags(g, 'L_o_w1', VG, SFL, 's58', RG)
    vxl()
    for k in range(4): g(f'ds_write_b128 {v(VW)}, {v(AC+4*k,4)} offset:{1024*k}')
    g('s_waitcnt lgkmcnt(0)')
    g('s_barrier')
    for k in range(4): g(f'ds_read_b128 {v(AC+4*k,4)}, {v(VR)} offset:{4096*k}')
    g(f'v_xor_b32 {v(VW)}, 16384, {v(VW)}')
    g(f'v_xor_b32 {v(VR)}, 16384, {v(VR)}')
    g('s_waitcnt lgkmcnt(0)')
    for i in range(4):
        g(f'v_add_f32 {v(AC+i)}, {v(AC+i)}, {v(AC+4+i)}')
        g(f'v_add_f32 {v(AC+8+i)}, {v(AC+8+i)}, {v(AC+12+i)}')
    for i in range(4): g(f'v_add_f32 {v(AC+i)}, {v(AC+i)}, {v(AC+8+i)}')
    g(cvt(AC, AC, AC+1)); g(cvt(AC+1, AC+2, AC+3))
    g(f'global_store_dwordx2 {v(VO)}, {v(AC,2)}, {s(SOU,2)}')
    sadv(g, SOU, 2*32*1792); sadv(g, SPX, 2*PX_STEP); sadv(g, SVM, 2*VM_STEP)
    g(f'''
    s_add_u32 {s(S_C3)}, {s(S_C3)}, 2
    s_cmp_ge_u32 {s(S_C3)}, 3
    s_cselect_b32 s36, 3, 0
    s_sub_u32 {s(S_C3)}, {s(S_C3)}, s36
    s_add_u32 {s(S_S)}, {s(S_S)}, 2
    s_cmp_lt_u32 {s(S_S)}, 64
    s_cbranch_scc1 L_o_loop
    s_endpgm
    ''')
```

```python
import numpy as np
MAT = 401408
WS_A   = 0x0000000
WS_B   = 0x0640000
WS_PRE = 0x0C80000
WS_MEM = WS_PRE + 63*8192
WS_P   = WS_MEM + 64*8192
WS_FLG = WS_P + 64*10240
PRE_UNITS = 63 + 64 + 80 + 2
WS_XA   = 0x0F00000
WS_XB   = 0x1100000
WS_OB   = 0x1300000
WS_KV   = 0x1500000
WS_PX   = 0x1600000
WS_VM   = 0x1900000
WS_VX   = 0x2000000
WS_DBG  = 0x7000000
VX_STEP = 458752
VM_STEP = 114688
PX_STEP = 40960
F_RDY   = 0
F_VX    = 1024
F_VM    = 4096
F_P     = 6144
F_KV    = 7168
F_O     = 7680
F_V     = 8192

def colA(w, tau, n):
    if tau < 4:
        return 112*w + 16*(n >> 2) + 8*((n >> 1) & 1) + 2*(n & 1) + 4*(tau >> 1) + (tau & 1)
    if tau < 6:
        return 112*w + 64 + 2*n + (tau & 1)
    return 112*w + 96 + n

def kperm(t, c2, gb, e):
    return 64*t + 32*c2 + 16*(gb >> 1) + 8*((e >> 1) & 1) + 4*(gb & 1) + 2*(e >> 2) + (e & 1)

def colB(j, tile, n):
    return 32*j + 16*tile + n

def keymap(sig):
    u = sig >> 2
    return 8*(u >> 1) + 2*(u & 1) + [0, 1, 4, 5][sig & 3]

def img_index_A():
    d = np.zeros((4, 7, 7, 2, 64, 8), np.int64); c = np.zeros_like(d)
    for w in range(4):
        for tau in range(7):
            for t in range(7):
                for c2 in range(2):
                    for l in range(64):
                        for e in range(8):
                            d[w, tau, t, c2, l, e] = kperm(t, c2, l >> 4, e)
                            c[w, tau, t, c2, l, e] = colA(w, tau, l & 15)
    return d, c

def img_index_B():
    d = np.zeros((14, 2, 7, 2, 64, 8), np.int64); c = np.zeros_like(d)
    for j in range(14):
        for tile in range(2):
            for t in range(7):
                for c2 in range(2):
                    for l in range(64):
                        for e in range(8):
                            d[j, tile, t, c2, l, e] = kperm(t, c2, l >> 4, e)
                            c[j, tile, t, c2, l, e] = colB(j, tile, l & 15)
    return d, c
```

```python
from gen import *

class Cnt:
    def __init__(self, g, name, cap):
        self.g = g; self.name = name; self.cap = cap; self.q = []; self.done = 0
    def issue(self, tag, n=1):
        for _ in range(n): self.q.append(tag)
    def need(self, tag):
        idx = max(i for i, t in enumerate(self.q) if t == tag)
        if idx < self.done: return None
        return len(self.q) - 1 - idx
    def wait(self, tag):
        n = self.need(tag)
        if n is None: return
        n = min(n, self.cap)
        self.g(f's_waitcnt {self.name}({n})')
        self.done = len(self.q) - n

def MF(d, a, b): return f'v_mfma_f32_16x16x32_bf16 {d}, {a}, {b}, {d}'
SCALE = 0x3db8aa3b

def prep(g):
    ACC, AOP, BOP, NBOP = 0, 112, 144, 6
    VA0, VA1, VB, VRA, VRB, VL, T0, LN = 168, 169, 170, 176, 177, 184, 185, 186
    IM = 192
    S_H, S_CQ, S_DH, S_ISB = 36, 37, 38, 39
    RA, RB, RO, RX = 40, 48, 56, 72
    S_LA = 70
    LA = 65536
    g.lab('prep_kernel')
    g(f'''
    s_cmp_ge_u32 s2, 256
    s_cbranch_scc1 P_end
    s_memrealtime s[96:97]
    s_load_dwordx16 s[4:19], s[0:1], 0
    s_load_dwordx8 s[20:27], s[0:1], 64
    s_load_dwordx2 s[28:29], s[0:1], 96
    v_lshrrev_b32 v1, 6, v0
    v_and_b32 {v(LN)}, 63, v0
    v_readfirstlane_b32 {s(S_W)}, v1
    v_lshlrev_b32 {v(VL)}, 4, {v(LN)}
    s_and_b32 s80, s2, 7
    s_lshl_b32 s80, s80, 2
    s_lshr_b32 s81, s2, 6
    s_add_u32 s80, s80, s81
    s_and_b32 {s(S_H)}, s80, 15
    s_lshr_b32 {s(S_ISB)}, s80, 4
    s_bfe_u32 {s(S_CQ)}, s2, 0x20004
    s_bfe_u32 {s(S_DH)}, s2, 0x10003
    s_mul_i32 {s(S_LA)}, {s(S_W)}, 24576
    s_add_u32 {s(S_LA)}, {s(S_LA)}, {LA}
    ''')
    g(f'''
    v_lshrrev_b32 {v(T0)}, 4, {v(LN)}
    v_xor_b32 {v(T0)}, {v(T0)}, {v(LN)}
    v_and_b32 {v(T0)}, 7, {v(T0)}
    v_lshlrev_b32 v2, 4, {v(T0)}
    v_xor_b32 v3, 64, v2
    ''')
    lanemap(g, VA0, [(5, 1, 4*8192), (4, 1, 8*8192), (3, 1, 8192)], lane=LN, tmp=T0)
    g(f'v_add_u32 {v(VA1)}, {16*8192}, {v(VA0)}')
    g(f'v_add_u32 {v(VA0)}, v2, {v(VA0)}')
    g(f'v_add_u32 {v(VA1)}, v3, {v(VA1)}')
    lanemap(g, VRA, [(0, 4, 128)], lane=LN, tmp=T0)
    g(f'''
    v_bfe_u32 v4, {v(LN)}, 1, 3
    v_lshrrev_b32 v5, 4, {v(LN)}
    v_xor_b32 v4, v4, v5
    v_lshl_add_u32 {v(VRA)}, v4, 4, {v(VRA)}
    s_waitcnt lgkmcnt(0)
    s_cmp_lg_u32 {s(S_ISB)}, 0
    s_cselect_b32 s80, {s(S_WV)}, {s(S_WQ)}
    s_cselect_b32 s81, {s(S_WV+1)}, {s(S_WQ+1)}
    s_mul_i32 s82, {s(S_DH)}, {224*8192}
    s_lshl_b32 s83, {s(S_W)}, 19
    s_add_u32 s82, s82, s83
    s_lshl_b32 s83, {s(S_H)}, 9
    s_add_u32 s82, s82, s83
    s_add_u32 {s(RA)}, s80, s82
    s_addc_u32 {s(RA+1)}, s81, 0
    ''')
    for rt in range(1, 4):
        sbase(g, RA+2*rt, RA, (32*(rt >> 1) + 2*(rt & 1))*8192)
    g(f'''
    s_cmp_eq_u32 s2, 63
    s_cbranch_scc1 P_nofill
    s_cmp_ge_u32 s2, {PRE_UNITS}
    s_cbranch_scc1 P_nofill
    v_mov_b32 v4, -1
    v_mov_b32 v5, -1
    v_mov_b32 v6, -1
    v_mov_b32 v7, -1
    s_lshl_b32 s80, s2, 13
    s_lshl_b32 s81, {s(S_W)}, 11
    s_add_u32 s80, s80, s81
    s_add_u32 s80, s80, {WS_PRE}
    s_add_u32 s80, {s(S_WS)}, s80
    s_addc_u32 s81, {s(S_WS+1)}, 0
    global_store_dwordx4 {v(VL)}, v[4:7], s[80:81]
    global_store_dwordx4 {v(VL)}, v[4:7], s[80:81] offset:1024
    ''')
    g.lab('P_nofill')
    g(f'''
    s_cmp_lg_u32 {s(S_ISB)}, 0
    s_cbranch_scc1 P_B
    s_cmp_eq_u32 {s(S_W)}, 3
    s_cbranch_scc1 P_A3
    ''')
    for isB in (0, 1):
        for w3 in (0, 1):
            g.lab(f'P_{"AB"[isB]}{"3" if w3 else ""}')
            if isB and not w3:
                g(f's_cmp_eq_u32 {s(S_W)}, 3')
                g('s_cbranch_scc1 P_B3')
            variant(g, isB, w3, locals())
    g.lab('P_end')
    g('s_endpgm')

def variant(g, isB, w3, E):
    ACC, AOP, BOP, NBOP, VA0, VA1, VB, VRA, VRB, VL, T0, LN, IM = [E[k] for k in
        'ACC AOP BOP NBOP VA0 VA1 VB VRA VRB VL T0 LN IM'.split()]
    S_H, S_CQ, S_DH, RA, RB, RO, RX, S_LA = [E[k] for k in 'S_H S_CQ S_DH RA RB RO RX S_LA'.split()]
    NRT = 2 if w3 else 4
    vm = Cnt(g, 'vmcnt', 63); lg = Cnt(g, 'lgkmcnt', 15)
    def dma(m0, vaddr, sa, off, tag):
        g(m0); g('s_nop 0')
        g(f'global_load_lds_dwordx4 {v(vaddr)}, {s(sa,2)} offset:{off}')
        vm.issue(tag)
    if not isB:
        g(f'''
        s_mul_i32 s82, {s(S_CQ)}, {112*8192}
        s_lshl_b32 s83, {s(S_H)}, 9
        s_add_u32 s82, s82, s83
        ''')
        R = 8192
        pats = [([(5, 1, 16*R), (4, 1, 8*R), (3, 1, 2*R)], 32*R),
                ([(3, 3, 2*R)], 16*R), ([(3, 3, R)], 8*R)]
        for k, (terms, bo) in enumerate(pats if w3 else pats[:1]):
            lanemap(g, VB+2*k, terms, lane=LN, tmp=T0)
            g(f'v_add_u32 {v(VB+2*k+1)}, {bo}, {v(VB+2*k)}')
            g(f'v_add_u32 {v(VB+2*k)}, v2, {v(VB+2*k)}')
            g(f'v_add_u32 {v(VB+2*k+1)}, v3, {v(VB+2*k+1)}')
        if w3:
            for k, ro in enumerate((5, 64, 65, 96)):
                g(f's_add_u32 s83, s82, {ro*R}')
                g(f's_add_u32 {s(RB+2*k)}, {s(S_WK)}, s83')
                g(f's_addc_u32 {s(RB+2*k+1)}, {s(S_WK+1)}, 0')
            taus = [(3, 0, 0), (4, 1, 1), (5, 1, 2), (6, 2, 3)]
            def bpart(ec):
                for tau, pat, k in taus:
                    for be in range(2):
                        dma(f's_mov_b32 m0, {ec*14336 + tau*2048 + be*1024 - ec*128}', VB+2*pat+be, RB+2*k, ec*128, ('d', ec))
        else:
            g(f'''
            s_mul_i32 s83, {s(S_W)}, {s(S_W)}
            s_lshl_b32 s83, s83, 13
            s_add_u32 s83, s83, s82
            s_add_u32 {s(RB)}, {s(S_WK)}, s83
            s_addc_u32 {s(RB+1)}, {s(S_WK+1)}, 0
            s_lshl_b32 s84, {s(S_W)}, 11
            ''')
            def bpart(ec):
                for be in range(2):
                    dma(f's_add_u32 m0, s84, {ec*14336 + be*1024 - ec*128}', VB+be, RB, ec*128, ('d', ec))
        g(f'v_xor_b32 {v(VRB)}, 64, {v(VRA)}')
        def bread(dst, ec, ka, T):
            g(f'ds_read_b128 {v(dst,4)}, {v(VRB if ka else VRA)} offset:{ec*14336 + T*2048}')
            lg.issue(('b', ec, ka, T))
        g(f'''
        s_lshl_b32 s80, {s(S_H)}, 2
        s_add_u32 s80, s80, {s(S_CQ)}
        s_mul_i32 s80, s80, {49*2048}
        s_mul_i32 s81, {s(S_DH)}, 7168
        s_add_u32 s80, s80, s81
        s_lshl_b32 s81, {s(S_W)}, 11
        s_add_u32 s80, s80, s81
        ''')
        for T in range(7):
            g(f's_add_u32 s81, s80, {WS_A + T*14336}')
            g(f's_add_u32 {s(RO+2*T)}, {s(S_WS)}, s81')
            g(f's_addc_u32 {s(RO+2*T+1)}, {s(S_WS+1)}, 0')
    else:
        g(f'''
        s_mul_i32 s82, {s(S_H)}, 229376
        s_mul_i32 s83, {s(S_CQ)}, 224
        s_add_u32 s82, s82, s83
        v_bfe_u32 v4, {v(LN)}, 1, 3
        v_lshrrev_b32 v5, 4, {v(LN)}
        v_xor_b32 v4, v4, v5
        ''')
        lanemap(g, 6, [(4, 2, 896), (0, 1, 16)], lane=LN, tmp=T0)
        if w3:
            g(f'''
            v_xor_b32 v5, 4, v4
            v_min_u32 v4, 6, v4
            v_min_u32 v5, 6, v5
            v_lshl_add_u32 {v(VB)}, v4, 5, v6
            v_lshl_add_u32 {v(VB+1)}, v5, 5, v6
            s_add_u32 s82, s82, {3*7168}
            s_add_u32 {s(RB)}, {s(S_WO)}, s82
            s_addc_u32 {s(RB+1)}, {s(S_WO+1)}, 0
            ''')
            def bpart(ec):
                for pr in range(3, 8):
                    for o in range(2):
                        dma(f's_mov_b32 m0, {ec*16384 + pr*2048 + o*1024 - o*3584}', VB+(pr & 1), RB, o*3584, ('d', ec))
                    sadv(g, RB, 7168 if pr < 7 else 4*7168)
        else:
            g(f'''
            s_and_b32 s83, {s(S_W)}, 1
            s_lshl_b32 s83, s83, 2
            v_xor_b32 v4, s83, v4
            v_min_u32 v4, 6, v4
            v_lshl_add_u32 {v(VB)}, v4, 5, v6
            v_add_u32 {v(VB+1)}, 3584, {v(VB)}
            s_mul_i32 s83, {s(S_W)}, 7168
            s_add_u32 s82, s82, s83
            s_add_u32 {s(RB)}, {s(S_WO)}, s82
            s_addc_u32 {s(RB+1)}, {s(S_WO+1)}, 0
            s_lshl_b32 s84, {s(S_W)}, 11
            ''')
            def bpart(ec):
                for o in range(2):
                    dma(f's_add_u32 m0, s84, {ec*16384 + o*1024}', VB+o, RB, 0, ('d', ec))
                sadv(g, RB, 8*7168)
        lanemap(g, VRB, [(4, 2, 2048), (2, 2, 256+32), (4, 1, 128), (0, 2, 8)], lane=LN, tmp=T0)
        for T in range(1, 7): g(f'v_xor_b32 {v(VRB+T)}, {T*32}, {v(VRB)}')
        def bread(dst, ec, ka, T):
            for hi in range(2):
                g(f'ds_read_b64_tr_b16 {v(dst+2*hi,2)}, {v(VRB+T)} offset:{ec*16384 + ka*8192 + hi*1024}')
            lg.issue(('b', ec, ka, T), 2)
        g(f'''
        s_mul_i32 s80, {s(S_H)}, {2*14336}
        s_mul_i32 s81, {s(S_DH)}, 7168
        s_add_u32 s80, s80, s81
        s_lshl_b32 s81, {s(S_W)}, 11
        s_add_u32 s80, s80, s81
        s_add_u32 s80, s80, {WS_B}
        s_mul_i32 s85, {s(S_CQ)}, 7
        ''')
        for T in range(7):
            g(f'''
            s_add_u32 s81, s85, {T}
            s_lshr_b32 s83, s81, 1
            s_and_b32 s81, s81, 1
            s_lshl_b32 s83, s83, 5
            s_add_u32 s81, s81, s83
            s_mul_i32 s81, s81, 14336
            s_add_u32 s81, s81, s80
            s_add_u32 {s(RO+2*T)}, {s(S_WS)}, s81
            s_addc_u32 {s(RO+2*T+1)}, {s(S_WS+1)}, 0
            ''')
    def apart(ec):
        for rt in range(NRT):
            for be in range(2):
                dma(f's_add_u32 m0, {s(S_LA)}, {(ec % 3)*8192 + rt*2048 + be*1024 - ec*128}', VA0+be, RA+2*rt, ec*128, ('d', ec))
    for ec in range(3):
        bpart(ec); apart(ec)
    bpart(3)
    VAR = T0+2
    g(f'v_add_u32 {v(VAR)}, {s(S_LA)}, {v(VRA)}')
    g(f'v_xor_b32 {v(VAR+1)}, 64, {v(VAR)}')
    for i in range(28*NRT): g(f'v_mov_b32 {v(ACC+i)}, 0')
    if w3:
        g(f'''
        s_lshr_b32 s80, s2, 2
        s_mul_i32 s80, s80, {32*896}
        s_bfe_u32 s81, s2, 0x10001
        s_mul_i32 s81, s81, {4*896}
        s_add_u32 s80, s80, s81
        s_and_b32 s81, s2, 1
        s_mul_i32 s81, s81, 448
        s_add_u32 s80, s80, s81
        s_add_u32 {s(RX)}, {s(S_X)}, s80
        s_addc_u32 {s(RX+1)}, {s(S_X+1)}, 0
        s_add_u32 {s(RX+2)}, {s(S_BX)}, s80
        s_addc_u32 {s(RX+3)}, {s(S_BX+1)}, 0
        ''')
        VXA, VXB = T0+4, T0+5
        lanemap(g, VXA, [(2, 2, 8*896), (0, 2, 896), (5, 1, 32), (4, 1, 8)], lane=LN, tmp=T0)
        lanemap(g, VXB, [(2, 2, 8*896), (0, 2, 896), (4, 2, 16)], lane=LN, tmp=T0)
        VK, XKR = 88, 56
        g(f'''
        s_lshr_b32 s80, s2, 2
        s_mul_i32 s80, s80, {32*896}
        s_and_b32 s81, s2, 3
        s_mul_i32 s81, s81, 224
        s_add_u32 s80, s80, s81
        s_add_u32 {s(RX+4)}, {s(S_X)}, s80
        s_addc_u32 {s(RX+5)}, {s(S_X+1)}, 0
        v_lshrrev_b32 {v(VK+3)}, 4, {v(LN)}
        v_min_u32 {v(VK+3)}, 2, {v(VK+3)}
        ''')
        key = [(3, 1, 8*896), (2, 1, 2*896), (0, 1, 896), (1, 1, 4*896)]
        lanemap(g, VK, key + [(4, 2, 32)], lane=LN, tmp=T0)
        lanemap(g, VK+1, key, const=128, lane=LN, tmp=T0)
        g(f'v_lshl_add_u32 {v(VK+1)}, {v(VK+3)}, 5, {v(VK+1)}')
        lanemap(g, VK+2, [(0, 4, 16)], const=1024, lane=LN, tmp=T0)
        g(f'v_lshl_add_u32 {v(VK+2)}, {v(VK+3)}, 8, {v(VK+2)}')
    bslot = 0
    for ec in range(4):
        vm.wait(('d', ec))
        g('s_barrier')
        units = [(ka, T) for ka in range(2) for T in range(7)]
        LOOK = NBOP - 1
        slots = {}
        def issue(u):
            nonlocal bslot
            ka, T = units[u]
            if T == 0:
                for rt in range(NRT):
                    g(f'ds_read_b128 {v(AOP+16*ka+4*rt,4)}, {v(VAR+ka)} offset:{(ec % 3)*8192 + rt*2048}')
                    lg.issue(('a', ec, ka))
            slots[u] = BOP + 4*bslot; bslot = (bslot + 1) % NBOP
            bread(slots[u], ec, ka, T)
        for u in range(LOOK): issue(u)
        for u, (ka, T) in enumerate(units):
            lg.wait(('b', ec, ka, T))
            for rt in range(NRT):
                g(MF(v(ACC+4*(rt*7+T), 4), v(AOP+16*ka+4*rt, 4), v(slots[u], 4)))
                if rt == 0 and u + LOOK < 14: issue(u + LOOK)
            if ec == 0 and u == 7: apart(3)
            if ec == 0 and u == 8 and w3:
                for i in range(7):
                    for p in range(2):
                        g(f'global_load_dwordx2 {v(IM+4*i+2*p,2)}, {v(VXA)}, {s(RX,2)} offset:{64*i+16*p}')
                    g(f'global_load_dwordx4 {v(IM+28+4*i,4)}, {v(VXB)}, {s(RX+2,2)} offset:{64*i}')
                    vm.issue('im', 3)
                for kt in range(2):
                    for ks in range(2):
                        for h in range(2):
                            g(f'global_load_dwordx4 {v(XKR+16*kt+8*ks+4*h,4)}, {v(VK+ks)}, {s(RX+4,2)} offset:{16*h}')
                            vm.issue('im')
                    if kt == 0: sadv(g, RX+4, 16*896)
    g('s_nop 7')
    if not isB: g(f's_mov_b32 s80, {SCALE}')
    for T in range(7):
        for b in range(NRT // 2):
            r0, r1 = ACC+4*((2*b)*7+T), ACC+4*((2*b+1)*7+T)
            if not isB:
                for r in (r0, r1):
                    for i in range(4): g(f'v_mul_f32 {v(r+i)}, s80, {v(r+i)}')
            g(f'v_cvt_pk_bf16_f32 {v(r0)}, {v(r0)}, {v(r0+1)}')
            g(f'v_cvt_pk_bf16_f32 {v(r0+1)}, {v(r0+2)}, {v(r0+3)}')
            g(f'v_cvt_pk_bf16_f32 {v(r0+2)}, {v(r1)}, {v(r1+1)}')
            g(f'v_cvt_pk_bf16_f32 {v(r0+3)}, {v(r1+2)}, {v(r1+3)}')
            g(f'global_store_dwordx4 {v(VL)}, {v(r0,4)}, {s(RO+2*T,2)} offset:{1024*b}')
            vm.issue('st')
    rts(g, 6, AOP, role='s2', sreg=96); rts(g, 7, AOP, role='s2')
    if w3:
        sbase(g, RX, S_WS, WS_XA + 4096, 2, 7168, 80)
        sbase(g, RX+2, RX, WS_XB - WS_XA)
        vm.wait('im')
        for i in range(7):
            g(f'v_swap_b32 {v(IM+4*i+1)}, {v(IM+4*i+2)}')
            g(f'global_store_dwordx4 {v(VL)}, {v(IM+4*i,4)}, {s(RX,2)} offset:{1024*i-4096}')
            g(f'global_store_dwordx4 {v(VL)}, {v(IM+28+4*i,4)}, {s(RX+2,2)} offset:{1024*i-4096}')
        sbase(g, RX+4, RX, WS_XK - WS_XA)
        for kt in range(2):
            for ks in range(2):
                for h in range(2):
                    g(f'global_store_dwordx4 {v(VK+2 if ks else VL)}, {v(XKR+16*kt+8*ks+4*h,4)}, {s(RX+4,2)} offset:{(kt*2+h)*1792-4096}')
        g('s_cmp_lg_u32 s2, 63')
        g('s_cbranch_scc1 P_end')
        lanemap(g, VXA, [(4, 2, 32), (1, 3, 896), (0, 1, 16)], lane=LN, tmp=T0)
        for i in range(7):
            g(f'global_load_dwordx4 {v(ACC+4*i,4)}, {v(VXA)}, {s(S_MEM0,2)} offset:{128*i}')
        sbase(g, RX, S_WS, WS_MEM + 4096)
        g('s_waitcnt vmcnt(0)')
        for i in range(7):
            g(f'v_min_u32 {v(ACC+4*i)}, 0xfffffffe, {v(ACC+4*i)}')
            g(f'v_min_u32 {v(ACC+4*i+2)}, 0xfffffffe, {v(ACC+4*i+2)}')
            g(f'global_store_dwordx4 {v(VL)}, {v(ACC+4*i,4)}, {s(RX,2)} offset:{1024*i-4096}')
    g('s_endpgm')
```

```python
from gen import *
from gen_prep import Cnt, MF

LOG2E = 0x3fb8aa3b
def MF0(d, a, b): return f'v_mfma_f32_16x16x32_bf16 {d}, {a}, {b}, 0'
def cvt(d, x, y): return f'v_cvt_pk_bf16_f32 {v(d)}, {v(x)}, {v(y)}'
def pack8(g, r0, r1):
    g(cvt(r0, r0, r0+1)); g(cvt(r0+1, r0+2, r0+3)); g(cvt(r0+2, r1, r1+1)); g(cvt(r0+3, r1+2, r1+3))

XR, ACC = 0, 128
VS = 240
LN, T0, T1, T2, VZ, VJ = 245, 246, 247, 248, 249, 250
S_G, S_R = 40, 41
SX, SF, SO = 42, 44, 46

def flagstore(g, sf, val, vt=T0, vz=VZ):
    g(f'v_mov_b32 {v(vt)}, {val}')
    g('s_mov_b64 exec, 1')
    g(f'global_store_dword {v(vz)}, {v(vt)}, {s(sf,2)} sc1')
    g('s_mov_b64 exec, -1')

def pollflags(g, name, vaddr, sa, thr, vt, sleep=2):
    g.lab(name)
    g(f'global_load_dword {v(vt)}, {v(vaddr)}, {s(sa,2)} sc1')
    spin_guard(g)
    g('s_waitcnt vmcnt(0)')
    g(f'v_cmp_ge_i32 vcc, {thr}, {v(vt)}')
    g(f's_cbranch_vccz {name}_ok')
    g(f's_sleep {sleep}')
    g(f's_branch {name}')
    g.lab(name + '_ok')

def gemm4(g, name, NK, wA, stride, nrounds, epi, E, flag=True, sc=''):
    NB = 2*NK
    vm = Cnt(g, 'vmcnt', 63)
    def ld(r, b):
        g(f'global_load_dwordx4 {v(XR+4*b,4)}, {v(VS+(b>>3))}, {s(SX,2)} offset:{(b&7)*1024-4096}{sc}')
        vm.issue(('ld', r, b))
    def dummy(tag):
        g(f'global_load_dword {v(VJ)}, {v(VS)}, {s(SX,2)}'); vm.issue(tag)
    order = [(ab*NK + kb) for kb in range(NK) for ab in range(2)]
    FP = NB // 2
    for i, b in enumerate(order):
        ld(0, b)
        if flag and i == FP: dummy('f')
    for i in range(E): dummy(('st', 0))
    sadv(g, SX, stride)
    g(f's_mov_b32 {s(S_R)}, 0')
    g.lab(name)
    for i, b in enumerate(order):
        ab, kb = b // NK, b % NK
        vm.wait(('ld', 0, b))
        for t in range(4):
            W = a_((t*NK+kb)*4, 4); X = v(XR+4*b, 4); D = v(ACC+16*ab+4*t, 4)
            f = MF0 if kb == 0 else MF
            g(f(D, W, X) if wA else f(D, X, W))
        ld(1, b)
        if flag and i == FP:
            if E: vm.wait(('st', 0))
            flagstore(g, SF, s(S_R)); vm.issue('f')
    g('s_nop 7')
    epi()
    g(f'''
    s_add_u32 {s(S_R)}, {s(S_R)}, 1
    s_cmp_lt_u32 {s(S_R)}, {nrounds-1}
    s_cselect_b32 s36, {stride}, 0
    ''')
    sadv(g, SX, 's36')
    g(f's_cmp_lt_u32 {s(S_R)}, {nrounds}')
    g(f's_cbranch_scc1 {name}')
    g('s_waitcnt vmcnt(0)')
    if flag: flagstore(g, SF, nrounds)

def worker(g):
    g.lab('L_worker')
    g(f'''
    s_sub_u32 {s(S_G)}, {s(S_ROLE)}, 32
    s_cmp_ge_u32 {s(S_G)}, 220
    s_cbranch_scc1 L_end
    s_cmp_ge_u32 {s(S_G)}, 144
    s_cbranch_scc1 L_po
    v_mov_b32 {v(LN)}, v0
    v_lshlrev_b32 {v(VS)}, 4, v0
    v_mov_b32 {v(VZ)}, 0
    ''')
    for k in range(1, 5): g(f'v_add_u32 {v(VS+k)}, {8192*k}, {v(VS)}')
    g(f's_cmp_ge_u32 {s(S_G)}, 112')
    g('s_cbranch_scc1 L_partb')
    vx(g)
    partb(g)
    g.lab('L_po')
    g(f's_cmp_ge_u32 {s(S_G)}, 192')
    g('s_cbranch_scc1 L_ocu')
    pcu(g)
    ocu(g)

def vx(g):
    S_H, S_C = 48, 49
    g(f'''
    s_and_b32 {s(S_H)}, {s(S_G)}, 15
    s_lshr_b32 {s(S_C)}, {s(S_G)}, 4
    s_lshl_b32 s36, {s(S_C)}, 6
    s_lshl_b32 s37, {s(S_H)}, 1
    s_add_u32 s36, s36, s37
    ''')
    sbase(g, 50, S_WS, WS_B + 4096, 36, 14336, 37)
    sbase(g, 52, 50, 32*14336)
    for t in range(4):
        for kb in range(14):
            o = (t & 1)*14 + kb
            g(f'global_load_dwordx4 {a_((t*14+kb)*4,4)}, {v(VS+(o>>3))}, {s(50+2*(t>>1),2)} offset:{(o&7)*1024-4096}')
    sbase(g, SX, S_WS, WS_XA + 4096, S_W, 28672, 37)
    g(f's_lshl_b32 s38, s36, 10')
    g(f's_mul_i32 s37, {s(S_W)}, {VX_STEP}')
    g(f's_add_u32 s38, s38, s37')
    sbase(g, SO, S_WS, WS_VX, 38, 1, 37)
    g(f's_mul_i32 s38, {s(S_W)}, 112')
    g(f's_add_u32 s38, s38, {s(S_G)}')
    sbase(g, SF, S_WS, WS_FLG + F_VX, 38, 4, 37)
    g('s_waitcnt vmcnt(24)')
    def epi():
        for t in range(4):
            pack8(g, ACC+4*t, ACC+16+4*t)
            g(f'global_store_dwordx4 {v(VS+4*(t>>1))}, {v(ACC+4*t,4)}, {s(SO,2)} offset:{1024*(t&1)} sc1')
        sadv(g, SO, 4*VX_STEP)
    rts(g, 2, T0)
    gemm4(g, 'L_vx', 14, False, 4*28672, 16, epi, 4)
    rts(g, 4, T0)
    WT, IMG, D, VIDX = 0, 56, 84, 88
    g(f'''
    s_lshr_b32 s37, {s(S_W)}, 1
    s_lshl_b32 s37, s37, 5
    s_and_b32 s38, {s(S_W)}, 1
    s_add_u32 s37, s37, s38
    s_mul_i32 s37, s37, 14336
    ''')
    sadv(g, 50, 's37')
    for kb in range(14):
        g(f'global_load_dwordx4 {v(WT+4*kb,4)}, {v(VS+(kb>>3))}, s[50:51] offset:{(kb&7)*1024-4096}')
    g(f'''
    v_and_b32 {v(T0)}, 1, {v(LN)}
    v_cmp_eq_u32 vcc, 1, {v(T0)}
    v_mov_b32 {v(VIDX)}, 0x44444444
    v_mov_b32 {v(T0)}, 0xeeeeeeee
    v_cndmask_b32 {v(VIDX)}, {v(VIDX)}, {v(T0)}, vcc
    s_lshl_b32 s36, {s(S_C)}, 1
    s_lshr_b32 s37, {s(S_W)}, 1
    s_add_u32 s36, s36, s37
    s_lshl_b32 s36, s36, 13
    s_lshr_b32 s37, {s(S_H)}, 2
    s_lshl_b32 s37, s37, 11
    s_add_u32 s36, s36, s37
    s_and_b32 s37, {s(S_W)}, 1
    s_lshl_b32 s37, s37, 10
    s_add_u32 s36, s36, s37
    s_and_b32 s37, {s(S_H)}, 3
    s_lshl_b32 s37, s37, 2
    s_add_u32 s36, s36, s37
    ''')
    sbase(g, SO, S_WS, WS_VM, 36, 1, 37)
    g(f'''
    s_lshl_b32 s36, {s(S_C)}, 2
    s_add_u32 s36, s36, {s(S_W)}
    s_lshl_b32 s36, s36, 4
    s_add_u32 s36, s36, {s(S_H)}
    ''')
    sbase(g, SF, S_WS, WS_FLG + F_VM, 36, 4, 37)
    sbase(g, SX, S_WS, WS_MEM + 4096)
    g(f's_mov_b32 {s(S_R)}, 0')
    def mld():
        for t in range(7):
            g(f'global_load_dwordx4 {v(IMG+4*t,4)}, {v(VS)}, {s(SX,2)} offset:{1024*t-4096} sc1')
    g.lab('L_vm')
    mld()
    g('s_waitcnt vmcnt(7)')
    flagstore(g, SF, s(S_R))
    for i in range(4): g(f'v_mov_b32 {v(D+i)}, 0')
    g('s_waitcnt vmcnt(1)')
    g.lab('L_vm_chk')
    for x in okchk(g, [IMG+2*i for i in range(14)], T0, 'L_vm_go'): g(x)
    g('s_sleep 2')
    mld()
    spin_guard(g)
    g('s_waitcnt vmcnt(0)')
    g('s_branch L_vm_chk')
    g.lab('L_vm_go')
    for t in range(7): g(SM(D, IMG+4*t, v(WT+8*t, 8), VIDX))
    g(f's_sub_u32 {s(SX)}, {s(SX)}, 8192')
    g(f's_subb_u32 {s(SX+1)}, {s(SX+1)}, 0')
    g(f's_add_u32 {s(S_R)}, {s(S_R)}, 1')
    g('s_nop 5')
    g(f'v_add_f32 {v(D)}, {v(D)}, {v(D+1)}')
    g(f'v_add_f32 {v(D+2)}, {v(D+2)}, {v(D+3)}')
    g(cvt(T1, D, D+2))
    g(f'global_store_dword {v(VS)}, {v(T1)}, {s(SO,2)} sc1')
    sadv(g, SO, VM_STEP)
    g(f's_cmp_lt_u32 {s(S_R)}, 64')
    g('s_cbranch_scc1 L_vm')
    g('s_waitcnt vmcnt(0)')
    flagstore(g, SF, 64)
    rts(g, 3, T0)
    g('s_endpgm')

def phi(g, r, n, tmp):
    for i in range(n): g(f'v_mul_f32 {v(tmp+i)}, s37, {v(r+i)}')
    for i in range(n): g(f'v_exp_f32_e64 {v(tmp+i)}, {v(tmp+i)} clamp')
    for i in range(n): g(f'v_max_f32 {v(r+i)}, 0, {v(r+i)}')
    for i in range(n): g(f'v_add_f32 {v(r+i)}, {v(r+i)}, {v(tmp+i)}')
    for i in range(n): g(f'v_add_f32 {v(r+i)}, s38, {v(r+i)}')

def panel(g, sw, pitch, colterms, scol, cmax, NK, rowl, rowu):
    P = 144
    g(f's_lshl_b32 s36, {s(S_W)}, 2')
    g(f's_mul_i32 s37, s36, {pitch}')
    lanemap(g, T1, colterms, sconst=scol, lane=LN, tmp=T0)
    if cmax: g(f'v_min_u32 {v(T1)}, {cmax}, {v(T1)}')
    lanemap(g, T2, [(4, 2, pitch)], sconst=37, lane=LN, tmp=T0)
    g(f'v_add_u32 {v(T1)}, {v(T1)}, {v(T2)}')
    g(f's_mul_i32 s37, s36, {P}')
    lanemap(g, T2, [(4, 2, P), (0, 4, 8)], sconst=37, lane=LN, tmp=T0)
    sbase(g, 50, sw, 0)
    for p in range(28):
        g(f'global_load_dwordx2 {v(XR+2*p,2)}, {v(T1)}, s[50:51]')
        if p < 27: sadv(g, 50, 16*pitch)
    g('s_barrier')
    for p in range(28):
        g(f's_waitcnt vmcnt({27-p})')
        g(f'ds_write_b64 {v(T2)}, {v(XR+2*p,2)} offset:{16*P*p}')
    g(f'ds_write_b64 {v(T2)}, {v(XR+54,2)} offset:{16*P*28}')
    lanemap(g, T1, [(4, 2, rowl*P), (2, 2, P), (0, 2, 8)], lane=LN, tmp=T0)
    g('s_waitcnt lgkmcnt(0)')
    g('s_barrier')
    n = 0
    for t in range(4):
        for kb in range(NK):
            for hi in range(2):
                g(f'ds_read_b64_tr_b16 {a_((t*NK+kb)*4+2*hi,2)}, {v(T1)} offset:{rowu(kb,hi)*P + 32*t}')
                n += 1
                if n % 8 == 0: g('s_waitcnt lgkmcnt(8)')
    g('s_waitcnt lgkmcnt(0)')

def partb(g):
    S_B = 48
    KV, ONE, TM = 160, 184, 192
    g.lab('L_partb')
    g(f's_sub_u32 {s(S_B)}, {s(S_G)}, 112')
    consts = f's_mov_b32 s37, {LOG2E}\ns_mov_b32 s38, 0x358637bd'
    g(f's_lshr_b32 s39, {s(S_B)}, 1')
    g(f's_mul_i32 s39, s39, 56')
    g(f's_add_u32 s39, s39, 896')
    panel(g, S_WQKV, 2688, [(3, 1, 896), (2, 1, 32), (0, 2, 8)], 39, 2680, 14, 8, lambda kb, hi: 32*kb+4*hi)
    g(f's_and_b32 s36, {s(S_B)}, 1')
    g(f's_lshl_b32 s36, s36, 5')
    g(f's_add_u32 s36, s36, {s(S_W)}')
    sbase(g, SX, S_WS, WS_XB + 4096, 36, 28672, 37)
    for i in range(24): g(f'v_mov_b32 {v(KV+i)}, 0')
    for i in range(4): g(f'v_mov_b32 {v(ONE+i)}, 0x3f803f80')
    def epi1():
        g(consts)
        for ab in range(2): phi(g, ACC+16*ab, 8, TM)
        for t in range(4): pack8(g, ACC+4*t, ACC+16+4*t)
        g('s_nop 1')
        for td in range(2):
            for te in range(3):
                g(MF(v(KV+4*(2*te+td), 4), v(ACC+4*td, 4), v(ACC+8+4*te if te < 2 else ONE, 4)))
    gemm4(g, 'L_b1', 14, False, 4*28672, 8, epi1, 0, flag=False)
    g('s_barrier')
    g(f's_mul_i32 s36, {s(S_W)}, 6144')
    g(f'v_add_u32 {v(T1)}, s36, {v(VS)}')
    for k in range(6): g(f'ds_write_b128 {v(T1)}, {v(KV+4*k,4)} offset:{1024*k}')
    g(f's_lshl_b32 s36, {s(S_W)}, 10')
    g(f'v_add_u32 {v(T1)}, s36, {v(VS)}')
    sbase(g, SO, S_WS, WS_KV, S_B, 6144, 37)
    g(f's_lshl_b32 s36, {s(S_B)}, 2')
    g(f's_add_u32 s36, s36, {s(S_W)}')
    sbase(g, SF, S_WS, WS_FLG + F_KV, 36, 4, 37)
    g('s_waitcnt lgkmcnt(0)')
    g('s_barrier')
    for rep in range(2):
        if rep:
            g(f's_cmp_ge_u32 {s(S_W)}, 2')
            g('s_cbranch_scc1 L_b1_done')
            g(f'v_add_u32 {v(T1)}, 4096, {v(T1)}')
        R = XR + 16*rep
        for k in range(4): g(f'ds_read_b128 {v(R+4*k,4)}, {v(T1)} offset:{6144*k}')
        g('s_waitcnt lgkmcnt(0)')
        for k in range(1, 4):
            for i in range(4): g(f'v_add_f32 {v(R+i)}, {v(R+i)}, {v(R+4*k+i)}')
        g(f'global_store_dwordx4 {v(T1)}, {v(R,4)}, {s(SO,2)} sc1')
    g.lab('L_b1_done')
    g('s_waitcnt vmcnt(0)')
    flagstore(g, SF, 1)
    rts(g, 2, T0)
    g(f's_and_b32 s49, {s(S_B)}, 7')
    g(f's_mul_i32 s39, s49, 112')
    panel(g, S_WQKV, 2688, [(3, 1, 56), (2, 1, 32), (0, 2, 8)], 39, 0, 14, 8, lambda kb, hi: 32*kb+4*hi)
    sbase(g, 50, S_WS, WS_FLG + F_KV, 49, 64, 37)
    lanemap(g, T1, [(0, 4, 4)], lane=LN, tmp=T0)
    pollflags(g, 'L_b2_w', T1, 50, 0, T2)
    sbase(g, 50, S_WS, WS_KV + 4096, 49, 4*6144, 37)
    for o in range(24):
        g(f'global_load_dwordx4 {v(XR+4*o,4)}, {v(VS+(o>>3))}, s[50:51] offset:{(o&7)*1024-4096} sc1')
    g(f'''
    v_and_b32 {v(T0)}, 15, {v(LN)}
    v_cmp_gt_u32 s[52:53], 12, {v(T0)}
    v_cmp_gt_u32 s[54:55], 48, {v(LN)}
    s_waitcnt vmcnt(0)
    ''')
    for u in range(2):
        for te in range(3):
            A = XR + 48*u + 8*te; D = KV + 12*u + 4*te
            for i in range(8): g(f'v_add_f32 {v(A+i)}, {v(A+i)}, {v(A+24+i)}')
            for i in range(4): g(cvt(D+i, A+2*i, A+2*i+1))
            for i in (2, 3): g(f'v_cndmask_b32_e64 {v(D+i)}, 0, {v(D+i)}, s[54:55]')
            if te == 1:
                for i in range(4): g(f'v_cndmask_b32_e64 {v(D+i)}, 0, {v(D+i)}, s[52:53]')
    g(f'''
    s_lshr_b32 s36, {s(S_B)}, 3
    s_lshl_b32 s36, s36, 4
    s_add_u32 s36, s36, {s(S_W)}
    ''')
    sbase(g, SX, S_WS, WS_XB + 4096, 36, 28672, 37)
    g(f's_lshl_b32 s38, s36, 4')
    g(f's_add_u32 s38, s38, s49')
    sbase(g, SO, S_WS, WS_OB, 38, 2048, 37)
    g(f'''
    s_lshr_b32 s36, {s(S_B)}, 3
    s_lshl_b32 s36, s36, 2
    s_add_u32 s36, s36, {s(S_W)}
    s_lshl_b32 s36, s36, 3
    s_add_u32 s36, s36, s49
    ''')
    sbase(g, SF, S_WS, WS_FLG + F_O, 36, 4, 37)
    def epi2():
        g(consts)
        for k in range(4):
            phi(g, ACC+8*k, 8, TM); pack8(g, ACC+8*k, ACC+8*k+4)
        g('s_nop 1')
        for k in range(4):
            for te in range(3):
                g(MF0(v(TM+12*k+4*te, 4), v(KV+12*(k & 1)+4*te, 4), v(ACC+8*k, 4)))
        g('s_nop 7')
        for k in range(4):
            g(f'v_add_f32 {v(TM+12*k+8)}, s38, {v(TM+12*k+8)}')
            g(f'v_rcp_f32 {v(TM+12*k+8)}, {v(TM+12*k+8)}')
        for k in range(4):
            R = TM+12*k
            for i in range(8): g(f'v_mul_f32 {v(R+i)}, {v(R+i)}, {v(R+8)}')
            pack8(g, R, R+4)
            g(f'global_store_dwordx4 {v(VS+2*(k>>1))}, {v(R,4)}, {s(SO,2)} offset:{1024*(k&1)} sc1')
        sadv(g, SO, 4*32768)
    gemm4(g, 'L_b2', 14, True, 4*28672, 4, epi2, 4)
    rts(g, 4, T0)
    g(f'''
    s_cmp_ge_u32 {s(S_B)}, 28
    s_cbranch_scc1 L_end
    s_mul_i32 s49, {s(S_B)}, 37
    s_lshr_b32 s49, s49, 8
    s_mul_i32 s39, s49, 7
    s_sub_u32 s39, {s(S_B)}, s39
    s_lshl_b32 s39, s39, 7
    ''')
    panel(g, S_BWO, 896, [(3, 1, 64), (2, 1, 8), (0, 2, 16)], 39, 0, 16, 4, lambda kb, hi: 28*kb+16*hi)
    g(f's_lshl_b32 s36, s49, 2')
    g(f's_add_u32 s36, s36, {s(S_W)}')
    sbase(g, 50, S_WS, WS_FLG + F_O, 36, 32, 37)
    lanemap(g, T1, [(0, 3, 4)], lane=LN, tmp=T0)
    pollflags(g, 'L_b3_w', T1, 50, 3, T2)
    g(f's_lshl_b32 s36, s49, 4')
    g(f's_add_u32 s36, s36, {s(S_W)}')
    sbase(g, SX, S_WS, WS_OB + 4096, 36, 32768, 37)
    sbase(g, SO, S_OUT, 896, 36, 32*1792, 37)
    sadv(g, SO, 's39')
    lanemap(g, T1, [(2, 2, 8*1792), (0, 2, 1792), (4, 2, 16)], lane=LN, tmp=T0)
    g(f'v_add_u32 {v(T2)}, {4*1792}, {v(T1)}')
    def epi3():
        for k in range(4):
            pack8(g, ACC+8*k, ACC+8*k+4)
            g(f'global_store_dwordx4 {v(T1+(k>>1))}, {v(ACC+8*k,4)}, {s(SO,2)} offset:{64*(k&1)}')
        sadv(g, SO, 4*32*1792)
    gemm4(g, 'L_b3', 16, True, 4*32768, 4, epi3, 4, flag=False, sc=' sc1')
    rts(g, 3, T0)
    g('s_endpgm')

def pcu(g):
    AC, XQ, QP, KX = 0, 28, 56, 84
    VL, LNp, U0, U1, U2, U3, U4, VZp = range(112, 120)
    S_H, S_S = 48, 49
    SXI, SK, SM_, SPX, SFP = 42, 44, 46, 52, 54
    LSX, LSM = 256, 256 + 16384
    g(f'''
    v_mov_b32 {v(LNp)}, v0
    v_lshlrev_b32 {v(VL)}, 4, v0
    v_mov_b32 {v(VZp)}, 0
    s_sub_u32 s36, {s(S_G)}, 144
    s_and_b32 {s(S_H)}, s36, 15
    s_lshr_b32 {s(S_S)}, s36, 4
    s_lshl_b32 s36, {s(S_H)}, 2
    s_add_u32 s36, s36, {s(S_W)}
    ''')
    sbase(g, 50, S_WS, WS_A, 36, 49*2048, 37)
    for b in range(49):
        for h in range(2):
            g(f'global_load_dwordx4 {blk(b, 4*h, 4)}, {v(VL)}, s[50:51] offset:{(b&1)*2048 + h*1024}')
        if b & 1: sadv(g, 50, 4096)
        if b >= 24: g('s_waitcnt vmcnt(48)')
    sbase(g, SXI, S_WS, WS_XA + 4096, S_S, 28672, 37)
    sbase(g, SK, S_X, 0, S_S, 32*896, 37)
    g(f's_mul_i32 s36, {s(S_W)}, 224')
    sadv(g, SK, 's36')
    g(f's_mul_i32 s36, {s(S_W)}, 1792')
    g(f's_lshl_b32 s37, {s(S_S)}, 13')
    g(f's_sub_u32 s36, s36, s37')
    g(f's_add_u32 s36, s36, {WS_MEM}')
    sbase(g, SM_, S_WS, 's36')
    g(f's_mul_i32 s36, {s(S_W)}, 20480')
    g(f's_lshl_b32 s37, {s(S_H)}, 10')
    g(f's_add_u32 s36, s36, s37')
    g(f's_add_u32 s36, s36, {WS_PX}')
    sbase(g, SPX, S_WS, 's36', S_S, PX_STEP, 37)
    g(f'''
    s_lshl_b32 s36, {s(S_S)}, 1
    s_add_u32 s36, s36, {s(S_W)}
    s_lshl_b32 s36, s36, 4
    s_add_u32 s36, s36, {s(S_H)}
    ''')
    sbase(g, SFP, S_WS, WS_FLG + F_P, 36, 4, 37)
    vm = Cnt(g, 'vmcnt', 63)
    rts(g, 2, U0)
    g.lab('L_p_loop')
    def xl(i):
        g(f'global_load_dwordx4 {v(XQ+4*(i%7),4)}, {v(VL)}, {s(SXI,2)} offset:{(i%7)*1024-4096}')
        vm.issue(('x', i))
        if i % 7 == 6: sadv(g, SXI, 7168 if i < 27 else 7168 + 2*28672)
    for i in range(7): xl(i)
    rows = [(2, 2, 8*896), (0, 2, 896)]
    lanemap(g, U0, rows + [(4, 2, 32)], lane=LNp, tmp=U4)
    lanemap(g, U1, rows + [(4, 2, 16)], lane=LNp, tmp=U4)
    lanemap(g, U2, rows + [(4, 2, 8)], lane=LNp, tmp=U4)
    for kt in range(2):
        K = KX + 14*kt; o = 3584*kt
        g(f'global_load_dwordx4 {v(K,4)}, {v(U0)}, {s(SK,2)} offset:{o}')
        g(f'global_load_dwordx4 {v(K+4,4)}, {v(U0)}, {s(SK,2)} offset:{o+16}')
        g(f'global_load_dwordx4 {v(K+8,4)}, {v(U1)}, {s(SK,2)} offset:{o+128}')
        g(f'global_load_dwordx2 {v(K+12,2)}, {v(U2)}, {s(SK,2)} offset:{o+192}')
        vm.issue('k', 4)
    sadv(g, SK, 3*32*896)
    g(f's_lshl_b32 s36, {s(S_W)}, 12')
    g(f'v_add_u32 {v(U0)}, s36, {v(VL)}')
    def smm(D, K, Q):
        g(MF0(v(D, 4), v(K, 4), v(Q, 4)))
        return [MF(v(D, 4), v(K+4, 4), v(Q+4, 4)), MF(v(D, 4), v(K+8, 4), v(Q+8, 4)),
                f'v_mfma_f32_16x16x16_bf16 {v(D,4)}, {v(K+12,2)}, {v(Q+12,2)}, {v(D,4)}']
    for tt in range(2):
        for kb in range(14):
            i = 14*tt + kb
            vm.wait(('x', i))
            for tau in range(7):
                g((MF0 if kb == 0 else MF)(v(AC+4*tau, 4), blk(tau*7+(kb >> 1), 4*(kb & 1), 4), v(XQ+4*(i % 7), 4)))
            if i + 7 < 28: xl(i+7)
        g('s_nop 7')
        Q = QP + 14*tt
        for r in range(4):
            for th in range(2): g(cvt(Q+4*(r >> 1)+2*th+(r & 1), AC+8*th+r, AC+8*th+4+r))
        for r in range(4): g(cvt(Q+8+r, AC+16+r, AC+20+r))
        g(cvt(Q+12, AC+24, AC+25)); g(cvt(Q+13, AC+26, AC+27))
        vm.wait('k')
        g('s_nop 1')
        L0 = smm(AC, KX, Q); L1 = smm(AC+4, KX+14, Q)
        for a, b in zip(L0, L1): g(a); g(b)
        g('s_nop 7')
        for kt in range(2): g(f'ds_write_b128 {v(U0)}, {v(AC+4*kt,4)} offset:{LSX+2048*tt+1024*kt}')
    keyt = [(2, 2, 64), (0, 1, 32)]
    lanemap(g, U0, keyt + [(4, 2, 256)], lane=LNp, tmp=U4)
    lanemap(g, U1, keyt + [(5, 1, 256), (4, 1, 16)], lane=LNp, tmp=U4)
    lanemap(g, U2, keyt + [(4, 2, 8)], lane=LNp, tmp=U4)
    def mk():
        g(f'global_load_dwordx4 {v(KX,4)}, {v(U0)}, {s(SM_,2)} sc1')
        g(f'global_load_dwordx4 {v(KX+4,4)}, {v(U0)}, {s(SM_,2)} offset:16 sc1')
        g(f'global_load_dwordx4 {v(KX+8,4)}, {v(U1)}, {s(SM_,2)} offset:1024 sc1')
        g(f'global_load_dwordx2 {v(KX+12,2)}, {v(U2)}, {s(SM_,2)} offset:1536 sc1')
    mk()
    g(f's_cmp_ge_u32 {s(S_W)}, 2')
    g('s_waitcnt lgkmcnt(0)')
    g('s_barrier')
    g('s_cbranch_scc1 L_p_chk0')
    g(f's_lshl_b32 s36, {s(S_W)}, 11')
    g(f'v_add_u32 {v(U3)}, s36, {v(VL)}')
    dst = [AC, XQ, XQ+8, XQ+16]
    for k in range(4):
        for kt in range(2): g(f'ds_read_b128 {v(dst[k]+4*kt,4)}, {v(U3)} offset:{LSX+4096*k+1024*kt}')
    g(f's_lshl_b32 s36, {s(S_W)}, 2')
    lanemap(g, U3, [(2, 2, 8), (0, 2, 1)], sconst=36, lane=LNp, tmp=U4)
    g(f'v_lshrrev_b32 {v(U4)}, 4, {v(LNp)}')
    g(f'v_lshlrev_b32 {v(U4)}, 3, {v(U4)}')
    g(f'v_sub_u32 {v(U3)}, {v(U3)}, {v(U4)}')
    g(f'v_mov_b32 {v(U4)}, 0xf149f2ca')
    g('s_waitcnt lgkmcnt(0)')
    for k in range(1, 4):
        for i in range(8): g(f'v_add_f32 {v(AC+i)}, {v(AC+i)}, {v(dst[k]+i)}')
    for i in range(8):
        g(f'v_cmp_le_i32 vcc, {i}, {v(U3)}')
        g('s_nop 1')
        g(f'v_cndmask_b32 {v(AC+i)}, {v(U4)}, {v(AC+i)}, vcc')
    M = AC+16
    g(f'v_max3_f32 {v(M)}, {v(AC)}, {v(AC+1)}, {v(AC+2)}')
    g(f'v_max3_f32 {v(M)}, {v(M)}, {v(AC+3)}, {v(AC+4)}')
    g(f'v_max3_f32 {v(M)}, {v(M)}, {v(AC+5)}, {v(AC+6)}')
    g(f'v_max_f32 {v(M)}, {v(M)}, {v(AC+7)}')
    g.lab('L_p_chk0')
    g('s_waitcnt vmcnt(0)')
    for x in okchk(g, [KX+2*i for i in range(7)], U4, 'L_p_go'): g(x)
    g('s_sleep 2')
    mk()
    spin_guard(g)
    g('s_branch L_p_chk0')
    g.lab('L_p_go')
    L0 = smm(AC+8, KX, QP); L1 = smm(AC+12, KX, QP+14)
    for a, b in zip(L0, L1): g(a); g(b)
    g(f's_lshl_b32 s36, {s(S_W)}, 10')
    g(f'v_lshl_add_u32 {v(U0)}, {v(LNp)}, 3, s36')
    g(f's_sub_u32 {s(SM_)}, {s(SM_)}, {3*8192}')
    g(f's_subb_u32 {s(SM_+1)}, {s(SM_+1)}, 0')
    g('s_nop 4')
    for tt in range(2): g(f'ds_write_b64 {v(U0)}, {v(AC+8+4*tt,2)} offset:{LSM+512*tt}')
    g(f's_cmp_ge_u32 {s(S_W)}, 2')
    g('s_waitcnt lgkmcnt(0)')
    g('s_barrier')
    g('s_cbranch_scc1 L_p_next')
    g(f's_lshl_b32 s36, {s(S_W)}, 9')
    g(f'v_lshl_add_u32 {v(U0)}, {v(LNp)}, 3, s36')
    for k in range(4): g(f'ds_read_b64 {v(AC+8+2*k,2)}, {v(U0)} offset:{LSM+1024*k}')
    g(f'''
    s_lshr_b32 s36, {s(S_H)}, 2
    s_add_u32 s36, s36, 16
    s_sub_u32 s36, s36, {s(S_H)}
    s_lshl_b32 s36, s36, 10
    s_and_b32 s37, {s(S_H)}, 3
    s_lshl_b32 s37, s37, 2
    s_add_u32 s36, s36, s37
    v_add_u32 {v(U1)}, s36, {v(VL)}
    s_waitcnt lgkmcnt(0)
    ''')
    for i in range(2):
        g(f'v_add_f32 {v(AC+8+i)}, {v(AC+8+i)}, {v(AC+10+i)}')
        g(f'v_add_f32 {v(AC+12+i)}, {v(AC+12+i)}, {v(AC+14+i)}')
    for i in range(2): g(f'v_add_f32 {v(AC+8+i)}, {v(AC+8+i)}, {v(AC+12+i)}')
    g(f'v_max3_f32 {v(M)}, {v(M)}, {v(AC+8)}, {v(AC+9)}')
    def allred(op):
        for sw in ('32', '16'):
            g(f'v_mov_b32 {v(M+1)}, {v(M)}')
            g('s_nop 1')
            g(f'v_permlane{sw}_swap_b32 {v(M)}, {v(M+1)}')
            g(f'v_{op}_f32 {v(M)}, {v(M)}, {v(M+1)}')
    allred('max')
    for i in range(10): g(f'v_sub_f32 {v(AC+i)}, {v(AC+i)}, {v(M)}')
    for i in range(10): g(f'v_exp_f32 {v(AC+i)}, {v(AC+i)}')
    g('s_nop 0')
    g(f'v_add_f32 {v(M)}, {v(AC)}, {v(AC+1)}')
    for i in range(2, 10): g(f'v_add_f32 {v(M)}, {v(M)}, {v(AC+i)}')
    allred('add')
    g(f'v_rcp_f32 {v(M)}, {v(M)}')
    g('s_nop 0')
    for i in range(10): g(f'v_mul_f32 {v(AC+i)}, {v(AC+i)}, {v(M)}')
    pack8(g, AC, AC+4)
    g(cvt(AC+8, AC+8, AC+9))
    g(f'global_store_dwordx4 {v(VL)}, {v(AC,4)}, {s(SPX,2)} sc1')
    g(f'global_store_dword {v(U1)}, {v(AC+8)}, {s(SPX,2)} sc1')
    g(f's_add_u32 s36, {s(S_S)}, 1')
    g('s_waitcnt vmcnt(0)')
    flagstore(g, SFP, 's36', U0, VZp)
    g.lab('L_p_next')
    sadv(g, SPX, 3*PX_STEP)
    g(f'''
    s_add_u32 {s(S_S)}, {s(S_S)}, 3
    s_cmp_lt_u32 {s(S_S)}, 64
    s_cbranch_scc1 L_p_loop
    ''')
    rts(g, 3, U0)
    g('s_endpgm')

def ocu(g):
    VX, PX, PM, VM, AC = 0, 32, 64, 72, 80
    VL, LNo, VF0, VFM, VF, VG, RF, RG, VO, VW, VR, U0, VL2 = range(100, 113)
    S_J, S_S, S_C3, S_N = 48, 49, 56, 57
    SVX, SPX, SVM, SFL, SOU = 42, 44, 46, 52, 54
    g.lab('L_ocu')
    g(f'''
    v_mov_b32 {v(LNo)}, v0
    v_lshlrev_b32 {v(VL)}, 4, v0
    v_add_u32 {v(VL2)}, 20480, {v(VL)}
    s_sub_u32 {s(S_J)}, {s(S_G)}, 192
    s_cmp_ge_u32 {s(S_J)}, 14
    s_cselect_b32 {s(S_S)}, 1, 0
    s_cselect_b32 s36, 14, 0
    s_sub_u32 {s(S_J)}, {s(S_J)}, s36
    s_mov_b32 {s(S_C3)}, {s(S_S)}
    s_lshl_b32 s36, {s(S_J)}, 2
    s_add_u32 s36, s36, {s(S_W)}
    s_lshl_b32 s38, s36, 13
    s_add_u32 s38, s38, {WS_VX + 4096}
    s_lshl_b32 s39, s36, 11
    s_add_u32 s39, s39, {WS_VM}
    ''')
    sbase(g, SVX, S_WS, 's38', S_S, VX_STEP, 37)
    sbase(g, SVM, S_WS, 's39', S_S, VM_STEP, 37)
    g(f's_lshl_b32 s38, {s(S_W)}, 12')
    g(f's_add_u32 s38, s38, {WS_PX}')
    sbase(g, SPX, S_WS, 's38', S_S, PX_STEP, 37)
    sbase(g, SFL, S_WS, WS_FLG)
    g(f'''
    s_lshl_b32 s36, {s(S_J)}, 7
    s_add_u32 s36, s36, {F_VM}
    v_mov_b32 {v(VF0)}, s36
    v_mov_b32 {v(U0)}, {F_P - 128}
    v_cmp_gt_u32 vcc, 32, {v(LNo)}
    v_mov_b32 {v(VFM)}, 128
    s_nop 0
    v_cndmask_b32 {v(VF0)}, {v(U0)}, {v(VF0)}, vcc
    v_cndmask_b32_e64 {v(VFM)}, {v(VFM)}, 0, vcc
    v_lshl_add_u32 {v(VF0)}, {v(LNo)}, 2, {v(VF0)}
    s_mul_i32 s38, {s(S_W)}, 3072
    s_sub_u32 s38, {16384}, s38
    v_add_u32 {v(U0)}, s38, {v(VL)}
    v_mov_b32 {v(PM)}, 0
    ''')
    VPM = 113
    g(f'v_mov_b32 {v(VPM)}, {v(U0)}')
    g(f'v_add_u32 {v(VPM+1)}, 20480, {v(U0)}')
    g(f'''
    s_lshr_b32 s36, {s(S_W)}, 1
    s_mul_i32 s36, s36, {4*1792}
    s_and_b32 s37, {s(S_W)}, 1
    s_lshl_b32 s37, s37, 5
    s_add_u32 s36, s36, s37
    s_lshl_b32 s37, {s(S_J)}, 6
    s_add_u32 s36, s36, s37
    ''')
    lanemap(g, VO, [(2, 2, 8*1792), (0, 2, 1792), (4, 2, 8)], sconst=36, lane=LNo, tmp=U0)
    sbase(g, SOU, S_OUT, 0, S_S, 32*1792, 37)
    g(f's_lshl_b32 s36, {s(S_W)}, 12')
    g(f'v_add_u32 {v(VW)}, s36, {v(VL)}')
    g(f's_lshl_b32 s36, {s(S_W)}, 10')
    g(f'v_add_u32 {v(VR)}, s36, {v(VL)}')
    VG0 = 115
    g(f's_lshr_b32 s36, {s(S_J)}, 1')
    g(f's_lshl_b32 s36, s36, 6')
    lanemap(g, VG0, [(0, 4, 4)], const=F_VX, sconst=36, lane=LNo, tmp=U0)
    def gaddr(sn):
        g(f's_and_b32 s36, {s(sn)}, 3')
        g(f's_mul_i32 s36, s36, 448')
        g(f'v_add_u32 {v(VG)}, s36, {v(VG0)}')
        g(f's_lshr_b32 s58, {s(sn)}, 2')
    def vxl():
        for b in range(8):
            g(f'global_load_dwordx4 {v(VX+4*b,4)}, {v(VL)}, {s(SVX,2)} offset:{1024*b-4096} sc1')
    gaddr(S_S)
    pollflags(g, 'L_o_w0', VG, SFL, 's58', RG)
    vxl()
    g.lab('L_o_loop')
    g(f'''
    s_add_u32 {s(S_N)}, {s(S_S)}, 2
    s_cmp_lt_u32 {s(S_N)}, 64
    s_cselect_b32 {s(S_N)}, {s(S_N)}, {s(S_S)}
    s_cselect_b32 s36, {2*VX_STEP}, 0
    ''')
    sadv(g, SVX, 's36')
    gaddr(S_N)
    g(f'v_mad_u32_u24 {v(VF)}, {v(VFM)}, {s(S_C3)}, {v(VF0)}')
    g(f'global_load_dword {v(RG)}, {v(VG)}, {s(SFL,2)} sc1')
    pollflags(g, 'L_o_w', VF, SFL, s(S_S), RF, 1)
    for tt in range(2):
        for q in range(4):
            g(f'global_load_dwordx4 {v(PX+16*tt+4*q,4)}, {v(VL2 if tt else VL)}, {s(SPX,2)} offset:{1024*q} sc1')
    for tt in range(2): g(f'global_load_dwordx4 {v(PM+4*tt,4)}, {v(VPM+tt)}, {s(SPX,2)} sc1')
    for t in range(2): g(f'global_load_dwordx4 {v(VM+4*t,4)}, {v(VL)}, {s(SVM,2)} offset:{1024*t} sc1')
    for tt in range(2):
        for q in range(4):
            g(f's_waitcnt vmcnt({11-4*tt-q})')
            for t in range(2):
                g((MF0 if q == 0 else MF)(v(AC+8*tt+4*t, 4), v(VX+8*q+4*t, 4), v(PX+16*tt+4*q, 4)))
    g('s_waitcnt vmcnt(0)')
    for tt in range(2):
        for t in range(2): g(MF(v(AC+8*tt+4*t, 4), v(VM+4*t, 4), v(PM+4*tt, 4)))
    g(f'v_cmp_ge_i32 vcc, s58, {v(RG)}')
    g('s_cbranch_vccz L_o_w1_ok')
    pollflags(g, 'L_o_w1', VG, SFL, 's58', RG)
    vxl()
    for k in range(4): g(f'ds_write_b128 {v(VW)}, {v(AC+4*k,4)} offset:{1024*k}')
    g('s_waitcnt lgkmcnt(0)')
    g('s_barrier')
    for k in range(4): g(f'ds_read_b128 {v(AC+4*k,4)}, {v(VR)} offset:{4096*k}')
    g(f'v_xor_b32 {v(VW)}, 16384, {v(VW)}')
    g(f'v_xor_b32 {v(VR)}, 16384, {v(VR)}')
    g('s_waitcnt lgkmcnt(0)')
    for i in range(4):
        g(f'v_add_f32 {v(AC+i)}, {v(AC+i)}, {v(AC+4+i)}')
        g(f'v_add_f32 {v(AC+8+i)}, {v(AC+8+i)}, {v(AC+12+i)}')
    for i in range(4): g(f'v_add_f32 {v(AC+i)}, {v(AC+i)}, {v(AC+8+i)}')
    g(cvt(AC, AC, AC+1)); g(cvt(AC+1, AC+2, AC+3))
    g(f'global_store_dwordx2 {v(VO)}, {v(AC,2)}, {s(SOU,2)}')
    sadv(g, SOU, 2*32*1792); sadv(g, SPX, 2*PX_STEP); sadv(g, SVM, 2*VM_STEP)
    g(f'''
    s_add_u32 {s(S_C3)}, {s(S_C3)}, 2
    s_cmp_ge_u32 {s(S_C3)}, 3
    s_cselect_b32 s36, 3, 0
    s_sub_u32 {s(S_C3)}, {s(S_C3)}, s36
    s_add_u32 {s(S_S)}, {s(S_S)}, 2
    s_cmp_lt_u32 {s(S_S)}, 64
    s_cbranch_scc1 L_o_loop
    ''')
    rts(g, 3, U0)
    g('s_endpgm')
```

```python
import numpy as np
MAT = 401408
WS_A   = 0x0000000
WS_B   = 0x0640000
WS_PRE = 0x0C80000
WS_MEM = WS_PRE + 63*8192
WS_P   = WS_MEM + 64*8192
WS_FLG = WS_P + 64*10240
PRE_UNITS = 63 + 64 + 80 + 2
WS_XA   = 0x0F00000
WS_XB   = 0x1100000
WS_OB   = 0x1300000
WS_KV   = 0x1500000
WS_PX   = 0x1600000
WS_VM   = 0x1900000
WS_VX   = 0x2000000
WS_XK   = 0x3C00000
WS_DBG  = 0x7000000
VX_STEP = 458752
VM_STEP = 114688
PX_STEP = 40960
F_RDY   = 0
F_VX    = 1024
F_VM    = 4096
F_P     = 6144
F_KV    = 7168
F_O     = 7680
F_V     = 8192

def colA(w, tau, n):
    if tau < 4:
        return 112*w + 16*(n >> 2) + 8*((n >> 1) & 1) + 2*(n & 1) + 4*(tau >> 1) + (tau & 1)
    if tau < 6:
        return 112*w + 64 + 2*n + (tau & 1)
    return 112*w + 96 + n

def kperm(t, c2, gb, e):
    return 64*t + 32*c2 + 16*(gb >> 1) + 8*((e >> 1) & 1) + 4*(gb & 1) + 2*(e >> 2) + (e & 1)

def colB(j, tile, n):
    return 32*j + 16*tile + n

def keymap(sig):
    u = sig >> 2
    return 8*(u >> 1) + 2*(u & 1) + [0, 1, 4, 5][sig & 3]

def img_index_A():
    d = np.zeros((4, 7, 7, 2, 64, 8), np.int64); c = np.zeros_like(d)
    for w in range(4):
        for tau in range(7):
            for t in range(7):
                for c2 in range(2):
                    for l in range(64):
                        for e in range(8):
                            d[w, tau, t, c2, l, e] = kperm(t, c2, l >> 4, e)
                            c[w, tau, t, c2, l, e] = colA(w, tau, l & 15)
    return d, c

def img_index_B():
    d = np.zeros((14, 2, 7, 2, 64, 8), np.int64); c = np.zeros_like(d)
    for j in range(14):
        for tile in range(2):
            for t in range(7):
                for c2 in range(2):
                    for l in range(64):
                        for e in range(8):
                            d[j, tile, t, c2, l, e] = kperm(t, c2, l >> 4, e)
                            c[j, tile, t, c2, l, e] = colB(j, tile, l & 15)
    return d, c
```

```python
import sys
from layout import *

NAME = 'concat_heads__memory_aug_recurrent_mem_tr__linear_attn_block__prompt'

class G:
    def __init__(self, opt):
        self.L = []; self.n = 0; self.opt = opt
    def __call__(self, s):
        for x in s.strip().split('\n'):
            self.L.append('    ' + x.strip())
    def lab(self, l): self.L.append(l + ':')
    def uniq(self, p):
        self.n += 1; return f'{p}_{self.n}'

def v(a, n=1): return f'v{a}' if n == 1 else f'v[{a}:{a+n-1}]'
def a_(a, n=1): return f'a{a}' if n == 1 else f'a[{a}:{a+n-1}]'
def s(a, n=1): return f's{a}' if n == 1 else f's[{a}:{a+n-1}]'

S_X, S_MEM0, S_WQ, S_WK, S_WV, S_WO, S_BX = 4, 6, 8, 10, 12, 14, 18
S_WQKV, S_BWO, S_OUT, S_DBG, S_WS = 20, 22, 24, 26, 28
S_XCC, S_W, S_ROLE, S_MODE, S_STEP, S_SPIN = 30, 31, 32, 33, 34, 35
DBG_CH = 4
DBG_ERR = 8
SPIN = 1 << 20

def blk(b, lo=0, n=8):
    if b < 32: return a_(8*b + lo, n)
    return v(120 + 8*(b-32) + lo, n)

def lanemap(g, dst, terms, const=0, sconst=None, lane=0, tmp=None):
    first = True
    if sconst is not None:
        g(f'v_mov_b32 {v(dst)}, {s(sconst)}')
        if const: g(f'v_add_u32 {v(dst)}, {const}, {v(dst)}')
    else:
        g(f'v_mov_b32 {v(dst)}, {const}')
    for sh, bits, mul in terms:
        g(f'v_bfe_u32 {v(tmp)}, {v(lane)}, {sh}, {bits}')
        if mul & (mul-1) == 0:
            g(f'v_lshl_add_u32 {v(dst)}, {v(tmp)}, {mul.bit_length()-1}, {v(dst)}')
        else:
            g(f'v_mul_u32_u24 {v(tmp)}, {mul}, {v(tmp)}')
            g(f'v_add_u32 {v(dst)}, {v(tmp)}, {v(dst)}')

def sbase(g, dst, src, off, sreg=None, mul=0, tmp=None):
    if sreg is not None:
        g(f's_mul_i32 {s(tmp)}, {s(sreg)}, {mul}')
        g(f's_add_u32 {s(tmp)}, {s(tmp)}, {off}')
        g(f's_add_u32 {s(dst)}, {s(src)}, {s(tmp)}')
    else:
        g(f's_add_u32 {s(dst)}, {s(src)}, {off}')
    g(f's_addc_u32 {s(dst+1)}, {s(src+1)}, 0')

def sadv(g, r, inc):
    g(f's_add_u32 {s(r)}, {s(r)}, {inc}')
    g(f's_addc_u32 {s(r+1)}, {s(r+1)}, 0')

def spin_guard(g):
    g(f's_sub_u32 {s(S_SPIN)}, {s(S_SPIN)}, 1')
    g(f's_cbranch_scc1 L_bail')

def stamp(g, idx):
    if g.opt.get('stamp', 0) >> idx & 1:
        g(f's_memtime {s(80+2*idx,2)}')
def stampi(g, idx):
    return [f's_memtime {s(80+2*idx,2)}'] if g.opt.get('stamp', 0) >> idx & 1 else []

def rts(g, slot, tv, role=None, sreg=None):
    if not g.opt.get('rt'): return
    if sreg is None:
        g('s_memrealtime s[98:99]'); sreg = 98
    g(f'''
    s_lshl_b32 s36, {s(S_ROLE) if role is None else role}, 2
    s_add_u32 s36, s36, {s(S_W)}
    s_lshl_b32 s36, s36, 5
    s_add_u32 s36, s36, {WS_DBG + 0x100000 + 4*slot}
    s_waitcnt lgkmcnt(0)
    v_mov_b32 {v(tv)}, s36
    v_mov_b32 {v(tv+1)}, {s(sreg)}
    s_mov_b64 exec, 1
    global_store_dword {v(tv)}, {v(tv+1)}, {s(S_WS,2)}
    s_mov_b64 exec, -1
    ''')

def interleave(g, mf, fill):
    for i, m in enumerate(mf):
        if m is None: continue
        g(m)
        for f in fill.get(i, []):
            if f.endswith(':'): g.lab(f[:-1])
            else: g(f)

def prologue(g):
    if g.opt.get('rt'): g('s_memrealtime s[96:97]')
    g(f'''
    s_load_dwordx16 s[4:19], s[0:1], 0
    s_load_dwordx8 s[20:27], s[0:1], 64
    s_load_dwordx2 s[28:29], s[0:1], 96
    s_getreg_b32 {s(S_XCC)}, hwreg(HW_REG_XCC_ID)
    v_lshrrev_b32 v1, 6, v0
    v_and_b32 v0, 63, v0
    v_readfirstlane_b32 {s(S_W)}, v1
    s_and_b32 {s(S_XCC)}, {s(S_XCC)}, 7
    s_mov_b32 {s(S_SPIN)}, {SPIN}
    s_waitcnt lgkmcnt(0)
    s_cmp_lg_u32 {s(S_W)}, 0
    s_cbranch_scc1 L_role_wait
    s_mov_b64 exec, 1
    s_mov_b32 s36, 0
    v_mov_b32 v2, 1
    ''')
    g.lab('L_tick')
    g(f'''
    s_add_u32 s37, {s(S_XCC)}, s36
    s_and_b32 s37, s37, 7
    s_lshl_b32 s38, s37, 5
    v_mov_b32 v1, s38
    global_atomic_add v3, v1, v2, {s(S_DBG,2)} sc0
    s_waitcnt vmcnt(0)
    v_readfirstlane_b32 s39, v3
    s_cmp_lt_u32 s39, 32
    s_cbranch_scc1 L_tick_got
    s_add_u32 s36, s36, 1
    s_cmp_lt_u32 s36, 8
    s_cbranch_scc1 L_tick
    s_mov_b32 s38, 0xffff
    s_branch L_tick_pub
    ''')
    g.lab('L_tick_got')
    g(f'''
    s_add_u32 s38, s38, s39
    s_cmp_lg_u32 s36, 0
    s_cselect_b32 s36, 0x100, 0
    s_or_b32 s38, s38, s36
    ''')
    g.lab('L_tick_pub')
    g(f'''
    v_mov_b32 v1, 0
    v_mov_b32 v2, s38
    ds_write_b32 v1, v2
    s_waitcnt lgkmcnt(0)
    s_mov_b64 exec, -1
    ''')
    g.lab('L_role_wait')
    g(f'''
    s_barrier
    v_mov_b32 v1, 0
    ds_read_b32 v2, v1
    s_waitcnt lgkmcnt(0)
    v_readfirstlane_b32 {s(S_ROLE)}, v2
    s_barrier
    s_cmp_eq_u32 {s(S_ROLE)}, 0xffff
    s_cbranch_scc1 L_end
    s_lshr_b32 {s(S_MODE)}, {s(S_ROLE)}, 8
    s_and_b32 {s(S_ROLE)}, {s(S_ROLE)}, 0xff
    ''')
    rts(g, 0, 1, sreg=96); rts(g, 1, 1)
    g(f'''
    s_cmp_ge_u32 {s(S_ROLE)}, 32
    s_cbranch_scc1 L_worker
    ''')

def chain_init(g):
    g(f'''
    s_cmp_lg_u32 {s(S_W)}, 0
    s_cbranch_scc1 L_pre_sig
    s_mov_b64 exec, 1
    s_lshl_b32 s36, {s(S_MODE)}, 16
    s_add_u32 s36, s36, 1
    v_mov_b32 v1, {DBG_CH}
    v_mov_b32 v2, s36
    global_atomic_add v1, v2, {s(S_DBG,2)}
    s_mov_b64 exec, -1
    ''')
    g.lab('L_pre_sig')
    g(f'''
    s_cmp_ge_u32 {s(S_ROLE)}, 30
    s_cbranch_scc1 L_helper
    s_cmp_ge_u32 {s(S_ROLE)}, 16
    s_cbranch_scc1 L_vcu
    ''')

def wait_chain_ready(g, tv):
    l = g.uniq('L_cw')
    g(f'v_mov_b32 {v(tv)}, {DBG_CH}')
    g.lab(l)
    spin_guard(g)
    g(f'''
    global_load_dword {v(tv+1)}, {v(tv)}, {s(S_DBG,2)} sc1
    s_waitcnt vmcnt(0)
    v_readfirstlane_b32 s36, {v(tv+1)}
    s_and_b32 s37, s36, 0xffff
    s_cmp_lg_u32 s37, 32
    s_cbranch_scc1 {l}
    s_lshr_b32 {s(S_MODE)}, s36, 16
    ''')

def load_blocks(g, base, voff, nblk, lds=None):
    out = 0
    for b in range(nblk):
        for h in range(2):
            g(f'global_load_dwordx4 {blk(b, 4*h, 4)}, {v(voff)}, {s(base,2)} offset:{(b&1)*2048 + h*1024} sc1')
        if b & 1: sadv(g, base, 4096)
        if b >= 24: g('s_waitcnt vmcnt(48)')

S_ROT = 56
def rot_table(g):
    if g.opt.get('rot', 1):
        g(f's_lshl_b32 s36, {s(S_W)}, 1')
        g(f's_add_u32 s36, s36, {s(S_ROLE)}')
        g(f's_mul_i32 s37, s36, 37')
        g(f's_lshr_b32 s37, s37, 8')
        g(f's_mul_i32 s37, s37, 7')
        g(f's_sub_u32 s36, s36, s37')
    else:
        g('s_mov_b32 s36, 0')
    g(f's_lshl_b32 {s(S_ROT)}, s36, 10')
    for t in range(1, 7):
        g(f's_add_u32 {s(S_ROT+t)}, {s(S_ROT+t-1)}, 1024')
        g(f's_cmp_eq_u32 {s(S_ROT+t)}, 7168')
        g(f's_cselect_b32 {s(S_ROT+t)}, 0, {s(S_ROT+t)}')

def srd(g, r):
    g(f's_mov_b32 {s(r+2)}, -1')
    g(f's_mov_b32 {s(r+3)}, 0x00020000')

def load_blocks_rot(g, base, voff, ntile, dst):
    n = 0
    for tau in range(ntile):
        for t in range(7):
            g(f's_lshl_b32 s36, {s(S_ROT+t)}, 1')
            for h in range(2):
                g(f'buffer_load_dwordx4 {dst(tau,t,h)}, {v(voff)}, {s(base,4)}, s36 offen offset:{1024*h} sc1')
            n += 2
            if n > 48: g('s_waitcnt vmcnt(48)')
        sadv(g, base, 14336)

def chk(g, regs, tmp, lab):
    L = []
    regs = list(regs)
    cur = regs.pop(0)
    while regs:
        if len(regs) >= 2:
            L.append(f'v_max3_u32 {v(tmp)}, {v(cur)}, {v(regs[0])}, {v(regs[1])}'); regs = regs[2:]
        else:
            L.append(f'v_max_u32 {v(tmp)}, {v(cur)}, {v(regs[0])}'); regs = []
        cur = tmp
    L.append(f'v_cmp_eq_u32 vcc, -1, {v(cur)}')
    L.append(f's_cbranch_vccnz {lab}')
    return L

def store2(g, instr):
    l1 = g.uniq('L_st'); l2 = g.uniq('L_st')
    g(f's_cbranch_scc1 {l1}')
    g(instr)
    g.lab(l2)
    g.tail.append((l1, [instr + ' sc1', f's_branch {l2}']))

def SM(d, a, b, idx): return f'v_smfmac_f32_16x16x64_bf16 {v(d,4)}, {v(a,4)}, {b}, {v(idx)}'

def okchk(g, regs, tmp, lab):
    L = chk(g, regs, tmp, lab)
    L[-1] = f's_cbranch_vccz {lab}'
    return L

def poll2(g, n, SI, VL, R0, R1, T0, head, sleep, sets):
    def ld(R):
        for t in range(2): g(f'buffer_load_dwordx4 {v(R+4*t,4)}, {v(VL)}, {s(SI,4)}, {s(S_ROT+t)} offen sc1')
    if sleep: g(f's_sleep {sleep}')
    if sets == 1:
        g.lab(f'L_{n}_poll')
        ld(R0)
        spin_guard(g)
        g('s_waitcnt vmcnt(0)')
        for x in chk(g, [R0, R0+2, R0+4, R0+6], T0, f'L_{n}_poll'): g(x)
        head(R0)
        return
    ld(R0)
    g(f's_sleep {g.opt.get("stag", 2)}')
    g.lab(f'L_{n}_poll')
    ld(R1)
    spin_guard(g)
    g('s_waitcnt vmcnt(2)')
    for x in okchk(g, [R0, R0+2, R0+4, R0+6], T0, f'L_{n}_go0'): g(x)
    ld(R0)
    g('s_waitcnt vmcnt(2)')
    for x in chk(g, [R1, R1+2, R1+4, R1+6], T0, f'L_{n}_poll'): g(x)
    head(R1)
    g(f's_branch L_{n}_go')
    g.lab(f'L_{n}_go0')
    head(R0)
    g.lab(f'L_{n}_go')

def tcu(g):
    if g.opt.get('pplain'): g.L = [x.replace('v[4:7], s[36:37] sc1','v[4:7], s[36:37]') for x in g.L]
    ACC, IMG, XK, MK = 0, 28, 56, 88
    VL, VIDX, VMK0, VMK1, VPF, VX1, VTA, VTB, VTC, VTR, VSW, VSR, T0, T1, VPS, T2 = range(104, 120)
    SI, SP, SXA = 40, 52, 44
    TB, SB, IB = 256, 256 + 8192, 16384
    SEX = 68
    g.lab('L_tcu')
    LN = T2
    g(f'v_mov_b32 {v(LN)}, v0')
    g(f'v_lshlrev_b32 {v(VL)}, 4, {v(LN)}')
    g(f's_lshl_b32 s36, {s(S_ROLE)}, 2')
    g(f's_add_u32 s36, s36, {s(S_W)}')
    sbase(g, 48, S_WS, WS_A, 36, 49*2048, 37)
    g(f's_mov_b32 s39, s36')
    g(f's_mov_b32 {s(SEX)}, 0x03ff03ff')
    g(f's_mov_b32 {s(SEX+1)}, 0x03ff03ff')
    srd(g, 48)
    rot_table(g)
    load_blocks_rot(g, 48, VL, 7, lambda tau, t, h: blk(tau*7+t, 4*h, 4))
    g(f'''
    v_and_b32 {v(T0)}, 1, {v(LN)}
    v_cmp_eq_u32 vcc, 1, {v(T0)}
    v_mov_b32 {v(VIDX)}, 0x44444444
    v_mov_b32 {v(T0)}, 0xeeeeeeee
    v_cndmask_b32 {v(VIDX)}, {v(VIDX)}, {v(T0)}, vcc
    s_mul_i32 s36, {s(S_W)}, {7*256}
    s_mul_i32 s37, {s(S_W)}, {7*32}
    v_lshrrev_b32 {v(T1)}, 4, {v(LN)}
    v_min_u32 {v(T1)}, 2, {v(T1)}
    ''')
    lanemap(g, VMK0, [(4, 2, 256), (0, 3, 32)], sconst=36, lane=LN, tmp=T0)
    lanemap(g, VMK1, [(0, 3, 32)], const=1024, sconst=36, lane=LN, tmp=T0)
    g(f'v_lshl_add_u32 {v(VMK1)}, {v(T1)}, 8, {v(VMK1)}')
    lanemap(g, VX1, [(0, 4, 16)], const=1024, lane=LN, tmp=T0)
    g(f'v_lshl_add_u32 {v(VX1)}, {v(T1)}, 8, {v(VX1)}')
    g(f's_lshl_b32 s36, {s(S_W)}, 11')
    lanemap(g, VTA, [(1, 1, 512), (3, 1, 256), (4, 2, 64), (0, 1, 16), (2, 1, 8)], const=TB, sconst=36, lane=LN, tmp=T0)
    lanemap(g, VTB, [(2, 1, 512), (4, 2, 64), (0, 1, 16), (3, 1, 8), (1, 1, 4)], const=TB+1024, sconst=36, lane=LN, tmp=T0)
    lanemap(g, VTC, [(3, 1, 512), (4, 2, 64), (1, 1, 16), (2, 1, 4), (0, 1, 2)], const=TB+1024+256, sconst=36, lane=LN, tmp=T0)
    lanemap(g, VTR, [(0, 6, 16)], const=TB, sconst=36, lane=LN, tmp=T0)
    g(f's_mul_i32 s36, {s(S_W)}, 1792')
    lanemap(g, VSW, [(4, 2, 448), (0, 4, 4)], const=SB, sconst=36, lane=LN, tmp=T0)
    g(f'''
    v_mov_b32 v0, 0
    v_mov_b32 v1, 0
    v_mov_b32 v2, 0
    v_mov_b32 v3, 0
    ds_write_b128 {v(VTR)}, v[0:3] offset:1024
    v_mov_b32 v0, 0xf149f2ca
    ''')
    lanemap(g, T1, [(3, 3, 224), (0, 3, 4)], const=SB+192, sconst=36, lane=LN, tmp=T0)
    g(f'ds_write_b32 {v(T1)}, v0')
    g(f's_mul_i32 s36, {s(S_W)}, 448')
    lanemap(g, VSR, [(4, 1, 224)], const=SB, sconst=36, lane=LN, tmp=T0)
    lanemap(g, 0, [(5, 1, 10), (0, 4, 1)], lane=LN, tmp=T0)
    g(f"""
    v_and_b32 {v(T0)}, 15, {v(LN)}
    v_cmp_gt_u32 vcc, 10, {v(T0)}
    v_lshlrev_b32 {v(T0)}, 3, v0
    v_mov_b32 {v(T1)}, 192
    v_cndmask_b32 {v(T0)}, {v(T1)}, {v(T0)}, vcc
    v_add_u32 {v(VSR)}, {v(VSR)}, {v(T0)}
    s_and_b32 s37, {s(S_ROLE)}, 3
    s_lshl_b32 s36, {s(S_W)}, 6
    s_lshl_b32 s38, s37, 9
    s_add_u32 s36, s36, s38
    """)
    lanemap(g, VPS, [(3, 1, 256), (1, 1, 16), (2, 1, 8), (0, 1, 4)], sconst=36, lane=0, tmp=T0)
    g(f'v_bfe_u32 v1, {v(LN)}, 4, 1')
    g(f'v_lshl_add_u32 {v(VPS)}, v1, 5, {v(VPS)}')
    g(f"""
    s_lshl_b32 s36, {s(S_W)}, 5
    s_and_b32 s38, s37, 1
    s_lshl_b32 s38, s38, 3
    s_add_u32 s36, s36, s38
    s_lshr_b32 s38, s37, 1
    s_lshl_b32 s38, s38, 2
    s_add_u32 s36, s36, s38
    """)
    lanemap(g, T1, [(0, 2, 128)], const=2048, sconst=36, lane=0, tmp=T0)
    g(f'v_lshl_add_u32 {v(T1)}, v1, 4, {v(T1)}')
    g(f"""
    v_cmp_lt_u32 vcc, 15, v0
    s_nop 1
    v_cndmask_b32 {v(VPS)}, {v(VPS)}, {v(T1)}, vcc
    s_lshr_b32 s37, {s(S_ROLE)}, 2
    """)
    sbase(g, SI, S_WS, WS_MEM)
    srd(g, SI)
    sbase(g, SP, S_WS, WS_P, 37, 2560, 36)
    sbase(g, SXA, S_WS, WS_XK + 4096, S_W, 7168, 36)
    xl = [f'global_load_dwordx4 {v(XK+16*kt+8*ks+4*h,4)}, {v(VX1 if ks else VL)}, {s(SXA,2)} offset:{(kt*2+h)*1792-4096}'
          for ks in range(2) for kt in range(2) for h in range(2)]
    XIN = g.opt.get('xin', 1)
    xpos = [g.opt.get('x0', 1) + g.opt.get('xs', 2)*r for r in range(8)]
    TP = g.opt.get('tp', 20)
    assert TP > xpos[-1] and TP >= 14
    def xld():
        if not XIN:
            for x in xl: g(x)
        sadv(g, SXA, 28672)
    PFD = g.opt.get('pfd', 3); NPF = g.opt.get('npf', 56)
    VPI = T2
    g(f'''
    s_mul_i32 s36, s39, {128*NPF}
    s_add_u32 s36, s36, {WS_VX}
    v_min_u32 {v(T0)}, {max(NPF-1,0)}, {v(LN)}
    v_lshl_add_u32 {v(VPF)}, {v(T0)}, 7, s36
    s_lshl_b32 s36, s39, 3
    v_and_b32 {v(T0)}, 7, {v(LN)}
    v_add_u32 {v(T0)}, s36, {v(T0)}
    v_min_u32 {v(T0)}, 359, {v(T0)}
    v_mov_b32 v0, {WS_XK}
    v_mov_b32 v1, 28672
    v_mov_b32 v2, {WS_P - 224*128}
    v_mov_b32 v3, 10240
    v_cmp_le_u32 vcc, 224, {v(T0)}
    s_nop 1
    v_cndmask_b32 v0, v0, v2, vcc
    v_cndmask_b32 v1, v1, v3, vcc
    v_mov_b32 v2, {WS_MEM + 8192 - 304*128}
    v_mov_b32 v3, 8192
    v_cmp_le_u32 vcc, 304, {v(T0)}
    s_nop 1
    v_cndmask_b32 v0, v0, v2, vcc
    v_cndmask_b32 v1, v1, v3, vcc
    v_lshl_add_u32 v0, {v(T0)}, 7, v0
    v_cmp_le_u32 vcc, 56, {v(LN)}
    v_mov_b32 {v(VPI)}, {VX_STEP}
    s_nop 0
    v_cndmask_b32 {v(VPF)}, {v(VPF)}, v0, vcc
    v_cndmask_b32 {v(VPI)}, {v(VPI)}, v1, vcc
    ''')
    g(f's_mov_b32 {s(S_STEP)}, 0')
    wait_chain_ready(g, T0)
    WA, WB, JK = MK+8, MK+9, T1
    touch = [f'global_load_dword {v(JK)}, {v(VPF)}, {s(S_WS,2)} sc1', f'v_add_u32 {v(VPF)}, {v(VPF)}, {v(VPI)}']
    for i in range(PFD):
        for x in touch: g(x)
    if not XIN: xld()
    g('s_waitcnt vmcnt(0)')
    rts(g, 2, T0)
    if g.opt.get('rt'):
        g('s_memtime s[96:97]'); rts(g, 4, T0, sreg=96); g('s_waitcnt vmcnt(0)')
    dump_stamps(g, T0, calib=True)
    g.lab('L_t_loop')
    for i in range(28): g(f'v_mov_b32 {v(ACC+i)}, 0')
    for t in range(7):
        g(f'v_add_u32 {v((WA, WB)[t] if t < 2 else IMG+4*t)}, {s(S_ROT+t)}, {v(VL)}')
    def T(tau, t, R=None): return SM(ACC+4*tau, (IMG if R is None else R)+4*t, blk(tau*7+t), VIDX)
    def head(R):
        stamp(g, 0)
        g(f'ds_write_b128 {v(WA)}, {v(R,4)} offset:{IB}')
        g(f'ds_write_b128 {v(WB)}, {v(R+4,4)} offset:{IB}')
        mf = [T(tau, t, R) for t in range(2) for tau in range(7)]
        rd = [f'ds_read_b128 {v(IMG+4*t,4)}, {v(IMG+4*t)} offset:{IB}' for t in range(2, 7)]
        bp = g.opt.get('bp', 6)
        fill = {bp: ['s_waitcnt lgkmcnt(0)', 's_barrier'] + rd[:1], bp+1: rd[1:3], bp+2: rd[3:5]}
        fill[13] = ['s_waitcnt lgkmcnt(4)']
        if XIN:
            for r in range(8):
                if xpos[r] < 14: fill[xpos[r]] = [xl[r]] + fill.get(xpos[r], [])
        interleave(g, mf, fill)
    poll2(g, 't', SI, VL, IMG, MK, T0, head, g.opt.get('tsleep', 0), g.opt.get('tsets', 2))
    mf = [None]*14; fill = {}
    def put(i, L): fill.setdefault(i, []).extend(L)
    for tau in range(7): mf.append(T(tau, 2))
    if XIN:
        for r in range(8):
            if xpos[r] >= 14: put(xpos[r], [xl[r]])
    if PFD: put(TP, touch)
    ny = (sum(1 for p in xpos if p <= 20) if XIN else 0) + (1 if PFD and TP <= 20 else 0)
    put(20, [f's_waitcnt vmcnt({ny}) lgkmcnt(0)'])
    if XIN: put(47, [f's_waitcnt vmcnt({1 if PFD else 0})'])
    mkl = [f'ds_read_b128 {v(MK+8*ks+4*h,4)}, {v(VMK0+ks)} offset:{IB+16*h}' for ks in range(2) for h in range(2)]
    for t in range(3, 7):
        for tau in range(4): mf.append(T(tau, t))
    SACC = IMG
    for t in range(3, 7):
        for tau in (4, 5): mf.append(T(tau, t))
    for t in range(3, 7): mf.append(T(6, t))
    def add(tau): return [f'v_add_f32 {v(ACC+4*tau)}, {v(ACC+4*tau)}, {v(ACC+4*tau+1)}',
                          f'v_add_f32 {v(ACC+4*tau+2)}, {v(ACC+4*tau+2)}, {v(ACC+4*tau+3)}']
    def cvt(d, x, y): return f'v_cvt_pk_bf16_f32 {v(d)}, {v(x)}, {v(y)}'
    loose = mkl + [f'v_mov_b32 {v(SACC+i)}, 0' for i in range(12)]
    for i in range(21, 36):
        while loose and len(fill.get(i, [])) < 2: put(i, [loose.pop(0)])
    assert not loose
    pa = g.opt.get('pa', 36)
    put(pa, add(0)); put(pa+1, add(1)); put(pa+2, add(2)); put(pa+3, add(3))
    put(pa+4, [cvt(ACC+0, ACC+0, ACC+4), cvt(ACC+1, ACC+8, ACC+12)])
    put(pa+5, [cvt(ACC+2, ACC+2, ACC+6), cvt(ACC+3, ACC+10, ACC+14)])
    put(pa+6, [f'ds_write_b64 {v(VTA)}, {v(ACC,2)}', f'ds_write_b64 {v(VTA)}, {v(ACC+2,2)} offset:32'])
    put(pa+7, [f'ds_read_b128 {v(ACC+4,4)}, {v(VTR)}'])
    put(46, add(4)); put(47, add(5))
    put(48, [cvt(ACC+16, ACC+16, ACC+20), cvt(ACC+17, ACC+18, ACC+22),
             f'ds_write2_b32 {v(VTB)}, {v(ACC+16)}, {v(ACC+17)} offset1:8', 's_waitcnt lgkmcnt(1)'])
    def Sm(kt, ks, a):
        b = v(XK+16*kt+8*ks, 8) if kt < 2 else v(MK+8*ks, 8)
        return SM(SACC+4*kt, a, b, VIDX)
    for kt in range(3): mf.append(Sm(kt, 0, ACC+4))
    put(49, ['s_nop 1'] + add(6) + [cvt(ACC+24, ACC+24, ACC+26),
                f'ds_write_b16 {v(VTC)}, {v(ACC+24)}',
                f'ds_write_b16_d16_hi {v(VTC)}, {v(ACC+24)} offset:32',
                f'ds_read_b128 {v(ACC+8,4)}, {v(VTR)} offset:1024'])
    put(51, ['s_waitcnt lgkmcnt(0)'])
    for kt in range(3): mf.append(Sm(kt, 1, ACC+8))
    for k, i in enumerate(g.opt.get('sp', [])): put(i, stampi(g, 5+k))
    interleave(g, mf, fill)
    stamp(g, 1)
    g('s_nop 3')
    for kt in range(3):
        g(f'v_add_f32 {v(SACC+4*kt)}, {v(SACC+4*kt)}, {v(SACC+4*kt+1)}')
        g(f'v_add_f32 {v(SACC+4*kt+2)}, {v(SACC+4*kt+2)}, {v(SACC+4*kt+3)}')
        g(f'ds_write2_b32 {v(VSW)}, {v(SACC+4*kt)}, {v(SACC+4*kt+2)} offset0:{16*kt} offset1:{16*kt+56}')
    g('s_waitcnt lgkmcnt(0)')
    g('s_barrier')
    R = ACC
    for k in range(4): g(f'ds_read_b64 {v(R+2*k,2)}, {v(VSR)} offset:{1792*k}')
    stamp(g, 4)
    g(f's_cmp_lg_u32 {s(S_MODE)}, 0')
    g('s_waitcnt lgkmcnt(2)')
    for i in range(2): g(f'v_add_f32 {v(R+i)}, {v(R+i)}, {v(R+2+i)}')
    g('s_waitcnt lgkmcnt(0)')
    for i in range(2): g(f'v_add_f32 {v(R+4+i)}, {v(R+4+i)}, {v(R+6+i)}')
    for i in range(2): g(f'v_add_f32 {v(R+i)}, {v(R+i)}, {v(R+4+i)}')
    M, A, B = R+4, R+5, R+6
    def allred(op):
        d = lambda dst, src, r, o: f'v_{op}_f32_dpp {v(dst)}, {v(src)}, {v(o)} row_ror:{r} row_mask:0xf bank_mask:0xf'
        g('s_nop 1')
        g(d(A, M, 1, M)); g(d(A, M, 2, A)); g(d(A, M, 3, A))
        g('s_nop 1')
        g(d(M, A, 4, A)); g(d(M, A, 8, M)); g(d(B, A, 12, M)); g(d(M, A, 12, M))
        g('s_nop 1')
        g(f'v_permlane32_swap_b32 {v(M)}, {v(B)}')
        g(f'v_{op}_f32 {v(M)}, {v(M)}, {v(B)}')
    g(f'v_max_f32 {v(M)}, {v(R)}, {v(R+1)}')
    allred('max')
    for i in range(2): g(f'v_sub_f32 {v(R+i)}, {v(R+i)}, {v(M)}')
    for i in range(2): g(f'v_exp_f32 {v(R+i)}, {v(R+i)}')
    g('s_nop 0')
    g(f'v_add_f32 {v(M)}, {v(R)}, {v(R+1)}')
    allred('add')
    g(f'v_rcp_f32 {v(M)}, {v(M)}')
    g(f's_mov_b64 exec, {s(SEX,2)}')
    for i in range(2): g(f'v_mul_f32_e64 {v(R+i)}, {v(R+i)}, {v(M)} clamp')
    g(cvt(R, R, R+1))
    store2(g, f'global_store_dword {v(VPS)}, {v(R)}, {s(SP,2)}')
    g('s_mov_b64 exec, -1')
    stamp(g, 2)
    if g.opt.get('xsleep'): g(f's_sleep {g.opt["xsleep"]}')
    xld()
    dump_stamps(g, ACC+8)
    sadv(g, SI, 8192); sadv(g, SP, 10240)
    g(f"""
    s_add_u32 {s(S_STEP)}, {s(S_STEP)}, 1
    s_cmp_lt_u32 {s(S_STEP)}, 63
    s_cbranch_scc1 L_t_loop
    s_waitcnt vmcnt(0)
    """)
    rts(g, 3, T0)
    if g.opt.get('rt'):
        g('s_memtime s[96:97]'); rts(g, 5, T0, sreg=96)
    g('s_endpgm')

def dump_stamps(g, tv, calib=False):
    if not g.opt.get('stamp'): return
    if calib:
        g('s_memrealtime s[80:81]'); g('s_memtime s[82:83]')
    g(f'''
    s_lshl_b32 s36, {s(S_ROLE)}, 2
    s_add_u32 s36, s36, {s(S_W)}
    s_lshl_b32 s36, s36, 6
    s_add_u32 s36, s36, {63 if calib else s(S_STEP)}
    s_lshl_b32 s36, s36, 5
    s_add_u32 s36, s36, {WS_DBG}
    v_mbcnt_lo_u32_b32 {v(tv)}, -1, 0
    s_waitcnt lgkmcnt(0)
    v_lshl_add_u32 {v(tv)}, {v(tv)}, 2, s36
    ''')
    for i in range(8):
        g(f'v_writelane_b32 {v(tv+1)}, {s(80+2*i)}, {i}')
    g('s_mov_b64 exec, 0xff')
    g(f'global_store_dword {v(tv)}, {v(tv+1)}, {s(S_WS,2)}')
    g('s_mov_b64 exec, -1')

def vcu(g):
    ACC, IMG, VX, LB, VM = 0, 32, 60, 92, 108-8
    VL, VIDX, VPX, VPM, VRW, VRR, VMS, VLB, VRDY, T0, T1, T2 = range(108, 120)
    SI, SP, SVX, SVM, SMX, SF = 40, 64, 44, 46, 66, 52
    RB, IB, BB = 256, 6144, 16384
    S_J = 54
    g.lab('L_vcu')
    LN = T2
    g(f'v_mov_b32 {v(LN)}, v0')
    g(f'v_lshlrev_b32 {v(VL)}, 4, {v(LN)}')
    g(f's_sub_u32 {s(S_J)}, {s(S_ROLE)}, 16')
    g(f's_lshl_b32 s36, {s(S_J)}, 2')
    g(f's_add_u32 s36, s36, {s(S_W)}')
    sbase(g, 48, S_WS, WS_B, 36, 56*2048, 37)
    sbase(g, SVX, S_WS, WS_VX + 4096, 36, 8192, 37)
    srd(g, 48)
    rot_table(g)
    load_blocks_rot(g, 48, VL, 8, lambda al, t, h: blk(al*7+t, 4*h, 4) if al < 7 else v(8*t+4*h, 4))
    g(f's_mul_i32 s36, {s(S_W)}, 14336')
    lanemap(g, VLB, [(0, 6, 16)], const=BB, sconst=36, lane=LN, tmp=T0)
    g('s_waitcnt vmcnt(0)')
    for b in range(7):
        for h in range(2):
            g(f'ds_write_b128 {v(VLB)}, {v(8*b+4*h,4)} offset:{2048*b+1024*h}')
    g(f'''
    v_and_b32 {v(T0)}, 1, {v(LN)}
    v_cmp_eq_u32 vcc, 1, {v(T0)}
    v_mov_b32 {v(VIDX)}, 0x44444444
    v_mov_b32 {v(T0)}, 0xeeeeeeee
    v_cndmask_b32 {v(VIDX)}, {v(VIDX)}, {v(T0)}, vcc
    ''')
    g(f'v_lshlrev_b32 {v(VPM)}, 3, {v(LN)}')
    g(f's_mul_i32 s36, {s(S_W)}, 1280')
    lanemap(g, VRW, [(4, 2, 320), (0, 4, 4)], const=RB, sconst=36, lane=LN, tmp=T0)
    lanemap(g, VRR, [(3, 3, 160), (0, 3, 16)], const=RB, lane=LN, tmp=T0)
    g(f's_lshl_b32 s36, {s(S_J)}, 9')
    lanemap(g, VMS, [(2, 1, 256), (3, 3, 32), (0, 2, 8)], const=8192, sconst=36, lane=LN, tmp=T0)
    sbase(g, SI, S_WS, WS_MEM)
    srd(g, SI)
    sbase(g, SP, S_WS, WS_P, S_W, 2560, 36)
    g(f'v_mov_b32 {v(VRDY)}, {WS_FLG + F_RDY}')
    g(f's_mov_b32 {s(S_STEP)}, 0')
    wait_chain_ready(g, T0)

    rts(g, 2, T0)
    dump_stamps(g, T0, calib=True)
    g.lab('L_v_loop')
    g(f'global_load_dword {v(T1)}, {v(VRDY)}, {s(S_WS,2)} sc1')
    for i in range(32): g(f'v_mov_b32 {v(ACC+i)}, 0')
    WA, WB = VX+8, VX+9
    for t in range(7):
        g(f'v_add_u32 {v((WA, WB)[t] if t < 2 else IMG+4*t)}, {s(S_ROT+t)}, {v(VL)}')
    def lb(t): return [f'ds_read_b128 {v(LB+4*h,4)}, {v(VLB)} offset:{2048*t+1024*h}' for h in range(2)]
    for x in lb(0): g(x)
    def kstep(t, R):
        return [SM(ACC+28, R, v(LB, 8), VIDX)] + [SM(ACC+4*al, R, blk(al*7+t), VIDX) for al in range(7)]
    def slow(name, L):
        L = L + [f's_sub_u32 {s(S_SPIN)}, {s(S_SPIN)}, 1', 's_cbranch_scc1 L_bail', 's_waitcnt vmcnt(0)', f's_branch {name}_re']
        g.tail.append((name, L))
    slow('L_v_s3', [f'global_load_dword {v(T1)}, {v(VRDY)}, {s(S_WS,2)} sc1'])
    def head(R):
        stamp(g, 0)
        g(f'ds_write_b128 {v(WA)}, {v(R,4)} offset:{IB}')
        g(f'ds_write_b128 {v(WB)}, {v(R+4,4)} offset:{IB}')
        g('s_waitcnt lgkmcnt(2)')
        mf = kstep(0, R) + kstep(1, R+4)
        rd = [f'ds_read_b128 {v(IMG+4*t,4)}, {v(IMG+4*t)} offset:{IB}' for t in range(2, 7)]
        fill = {1: lb(1), 7: ['s_waitcnt lgkmcnt(0)', 's_barrier'], 9: lb(2), 10: rd[:2], 11: rd[2:4], 12: rd[4:],
                15: ['s_waitcnt lgkmcnt(0)']}
        fill[13] = ['L_v_s3_re:'] + chk(g, [T1], T0, 'L_v_s3')
        interleave(g, mf, fill)
    assert g.opt.get('vsets', 1) == 1
    poll2(g, 'v', SI, VL, IMG, VX, T0, head, g.opt.get('vsleep', 0), 1)
    mf = [None]*16; fill = {}
    for t in range(2, 7):
        mf += kstep(t, IMG+4*t)
        if t < 6:
            fill[8*t+1] = lb(t+1)
            fill[8*t+7] = ['s_waitcnt lgkmcnt(0)']
    k = 0
    for kap in range(2):
        for tile in range(2):
            for c2 in range(2):
                fill.setdefault(16+g.opt.get('vs', 4)*k, []).append(
                    f'global_load_dwordx4 {v(VX+16*kap+8*tile+4*c2,4)}, {v(VL)}, {s(SVX,2)} offset:{((2*kap+c2)*2+tile)*1024-4096} sc1')
                k += 1
    interleave(g, mf, fill)
    order = [7, 0, 1, 2, 3, 4, 5, 6]
    g('s_nop 1')
    for al in order:
        q, tile = al >> 1, al & 1
        g(f'v_add_f32 {v(ACC+4*al)}, {v(ACC+4*al)}, {v(ACC+4*al+1)}')
        g(f'v_add_f32 {v(ACC+4*al+2)}, {v(ACC+4*al+2)}, {v(ACC+4*al+3)}')
        g(f'v_cvt_pk_bf16_f32 {v(VM+4*tile+q)}, {v(ACC+4*al)}, {v(ACC+4*al+2)}')
    stamp(g, 1)
    PA, PV = IMG, IMG+12
    for i in range(8): g(f'v_mov_b32 {v(PV+i)}, 0')
    if g.opt.get('psleep'): g(f's_sleep {g.opt["psleep"]}')
    def pld(R):
        g(f'global_load_dwordx4 {v(R,4)}, {v(VL)}, {s(SP,2)} sc1')
        g(f'global_load_dwordx4 {v(R+4,4)}, {v(VL)}, {s(SP,2)} offset:1024 sc1')
        g(f'global_load_dwordx2 {v(R+8,2)}, {v(VPM)}, {s(SP,2)} offset:2048 sc1')
    def pv(R):
        stamp(g, 2)
        for kap in range(2):
            for tile in range(2):
                g(SM(PV+4*tile, R+4*kap, v(VX+16*kap+8*tile, 8), VIDX))
        for tile in range(2):
            g(f'v_smfmac_f32_16x16x32_bf16 {v(PV+4*tile,4)}, {v(R+8,2)}, {v(VM+4*tile,4)}, {v(VIDX)}')
    pr = lambda R: list(range(R, R+10))
    if g.opt.get('psets', 2) == 1:
        g.lab('L_v_ppoll')
        pld(PA)
        spin_guard(g)
        g('s_waitcnt vmcnt(0)')
        for x in chk(g, pr(PA), T0, 'L_v_ppoll'): g(x)
        pv(PA)
    else:
        PB = ACC+16
        pld(PA)
        g(f's_sleep {g.opt.get("stag", 2)}')
        g.lab('L_v_ppoll')
        pld(PB)
        spin_guard(g)
        g('s_waitcnt vmcnt(3)')
        for x in okchk(g, pr(PA), T0, 'L_v_pgo0'): g(x)
        pld(PA)
        g('s_waitcnt vmcnt(3)')
        for x in chk(g, pr(PB), T0, 'L_v_ppoll'): g(x)
        pv(PB)
        g('s_branch L_v_pgo')
        g.lab('L_v_pgo0')
        pv(PA)
        g.lab('L_v_pgo')
    g('s_nop 6')
    for tile in range(2):
        g(f'v_add_f32 {v(PV+4*tile)}, {v(PV+4*tile)}, {v(PV+4*tile+1)}')
        g(f'v_add_f32 {v(PV+4*tile+2)}, {v(PV+4*tile+2)}, {v(PV+4*tile+3)}')
        g(f'ds_write2_b32 {v(VRW)}, {v(PV+4*tile)}, {v(PV+4*tile+2)} offset0:{16*tile} offset1:{16*tile+40}')
    g(f's_cmp_lg_u32 {s(S_W)}, 0')
    g('s_waitcnt lgkmcnt(0)')
    g('s_barrier')
    g('s_cbranch_scc1 L_v_nored')
    R = ACC
    for k in range(4): g(f'ds_read_b128 {v(R+4*k,4)}, {v(VRR)} offset:{1280*k}')
    stamp(g, 4)
    g(f's_cmp_lg_u32 {s(S_MODE)}, 0')
    g('s_waitcnt lgkmcnt(2)')
    for i in range(4): g(f'v_add_f32 {v(R+i)}, {v(R+i)}, {v(R+4+i)}')
    g('s_waitcnt lgkmcnt(0)')
    for i in range(4): g(f'v_add_f32 {v(R+8+i)}, {v(R+8+i)}, {v(R+12+i)}')
    for i in range(4): g(f'v_add_f32 {v(R+i)}, {v(R+i)}, {v(R+8+i)}')
    g(f'v_cvt_pk_bf16_f32 {v(R)}, {v(R)}, {v(R+1)}')
    g(f'v_cvt_pk_bf16_f32 {v(R+1)}, {v(R+2)}, {v(R+3)}')
    g(f'v_min_u32 {v(R)}, 0xfffffffe, {v(R)}')
    store2(g, f'global_store_dwordx2 {v(VMS)}, {v(R,2)}, {s(SI,2)}')
    stamp(g, 3)
    g('s_waitcnt vmcnt(1)')
    g.lab('L_v_join')
    g.tail.append(('L_v_nored', stampi(g, 3) + ['s_waitcnt vmcnt(0)', 's_branch L_v_join']))
    dump_stamps(g, T0)
    sadv(g, SI, 8192); sadv(g, SP, 10240); sadv(g, SVX, 0 if g.opt.get('fix') else VX_STEP)
    g(f'v_add_u32 {v(VRDY)}, 4, {v(VRDY)}')
    g(f's_add_u32 {s(S_STEP)}, {s(S_STEP)}, 1')
    g(f's_cmp_lt_u32 {s(S_STEP)}, 63')
    g('s_cbranch_scc1 L_v_loop')
    rts(g, 3, T0)
    g('s_endpgm')

def helper(g):
    g.lab('L_helper')
    wait_chain_ready(g, 4)
    g(f'''
    v_lshlrev_b32 v1, 4, v0
    s_cmp_lg_u32 {s(S_ROLE)}, 30
    s_cbranch_scc1 L_end
    s_cmp_eq_u32 {s(S_W)}, 1
    s_cbranch_scc1 L_h_rdy
    s_cmp_lg_u32 {s(S_W)}, 0
    s_cbranch_scc1 L_end
    ''')
    sbase(g, 40, S_WS, WS_MEM + 8192 + 4096)
    sbase(g, 42, S_WS, WS_MEM - 8192 + 4096)
    g(f's_mov_b32 {s(S_STEP)}, 1')
    g.lab('L_h_cp')
    for t in range(7): g(f'global_load_dwordx4 {v(4+4*t,4)}, v1, s[40:41] offset:{1024*t-4096} sc1')
    spin_guard(g)
    g('s_waitcnt vmcnt(0)')
    for x in chk(g, [4+2*i for i in range(14)], 2, 'L_h_cp'): g(x)
    for t in range(7): g(f'global_store_dwordx4 v1, {v(4+4*t,4)}, s[42:43] offset:{1024*t-4096} sc1')
    sadv(g, 40, 8192)
    g(f'''
    s_sub_u32 s42, s42, 8192
    s_subb_u32 s43, s43, 0
    s_add_u32 {s(S_STEP)}, {s(S_STEP)}, 1
    s_sleep {g.opt.get('hsleep', 16)}
    s_cmp_lt_u32 {s(S_STEP)}, 64
    s_cbranch_scc1 L_h_cp
    s_endpgm
    ''')
    g.lab('L_h_rdy')
    sbase(g, 40, S_WS, WS_FLG)
    g(f'''
    v_lshlrev_b32 v1, 2, v0
    v_add_u32 v2, 256, v1
    v_min_u32 v2, 444, v2
    v_mov_b32 v8, {F_RDY}
    v_mov_b32 v9, 1
    s_mov_b32 {s(S_STEP)}, 0
    ''')
    g.lab('L_h_r0')
    g(f'''
    s_and_b32 s36, {s(S_STEP)}, 3
    s_mul_i32 s36, s36, 448
    s_lshr_b32 s37, {s(S_STEP)}, 2
    v_add_u32 v3, s36, v1
    v_add_u32 v4, s36, v2
    ''')
    g.lab('L_h_r1')
    g(f'global_load_dword v5, v3, s[40:41] offset:{F_VX} sc1')
    g(f'global_load_dword v6, v4, s[40:41] offset:{F_VX} sc1')
    spin_guard(g)
    g(f'''
    s_waitcnt vmcnt(0)
    v_min_i32 v5, v5, v6
    v_cmp_ge_i32 vcc, s37, v5
    s_cbranch_vccnz L_h_r1
    s_mov_b64 exec, 1
    s_cmp_lg_u32 {s(S_MODE)}, 0
    ''')
    store2(g, 'global_store_dword v8, v9, s[40:41]')
    g(f'''
    s_mov_b64 exec, -1
    v_add_u32 v8, 4, v8
    s_add_u32 {s(S_STEP)}, {s(S_STEP)}, 1
    s_cmp_lt_u32 {s(S_STEP)}, 64
    s_cbranch_scc1 L_h_r0
    s_endpgm
    ''')

def kd(K, nv, acc):
    return f'''.amdhsa_kernel {K}
  .amdhsa_next_free_vgpr {nv}
  .amdhsa_next_free_sgpr 102
  .amdhsa_accum_offset {acc}
  .amdhsa_group_segment_fixed_size 0
  .amdhsa_kernarg_size 104
  .amdhsa_user_sgpr_count 2
  .amdhsa_user_sgpr_kernarg_segment_ptr 1
  .amdhsa_system_sgpr_workgroup_id_x 1
.end_amdhsa_kernel
'''

def build(opt):
    import gen_prep, gen_w
    g = G(opt); g.tail = []
    K = NAME + '_kernel'
    hdr = ['; @launch kernel=prep_kernel grid=(256,1,1) block=(256,1,1) lds=163840',
           f'; @launch kernel={K} grid=(256,1,1) block=(256,1,1) lds={opt.get("lds", 98304)}',
           '.amdgcn_target "amdgcn-amd-amdhsa--gfx950"', '.text',
           '.globl prep_kernel', '.p2align 8', '.type prep_kernel,@function']
    gen_prep.prep(g)
    g.L += [f'.globl {K}', '.p2align 8', f'.type {K},@function', f'{K}:']
    prologue(g)
    chain_init(g)
    tcu(g)
    vcu(g)
    helper(g)
    for l, L in g.tail:
        g.lab(l)
        for x in L: g(x)
    g.tail = []
    g.lab('L_bail')
    g(f'''
    s_mov_b64 exec, 1
    v_mov_b32 v0, {DBG_ERR}
    v_mov_b32 v1, 1
    global_atomic_add v0, v1, {s(S_DBG,2)}
    ''')
    g.lab('L_end')
    g('s_endpgm')
    gen_w.worker(g)
    assert not g.tail
    ftr = '.section .rodata,"a"\n.p2align 6\n' + kd('prep_kernel', 256, 256) + '.p2align 6\n' + kd(K, 512, 256)
    return '\n'.join(hdr + g.L) + '\n' + ftr

if __name__ == '__main__':
    opt = {}
    out = sys.argv[1]
    for a in sys.argv[2:]:
        k, x = a.split('='); opt[k] = [int(y) for y in x.split(',')] if k == 'sp' else int(x)
    open(out, 'w').write(build(opt))
```
